```python
import torch

def _softmax(x, axis=-1):
    return torch.softmax(x, dim=axis)
def _gelu(x):
    return torch.nn.functional.gelu(x, approximate="tanh")
def _silu(x):
    return torch.nn.functional.silu(x)
def _sigmoid(x):
    return torch.sigmoid(x)
def _layernorm(x, axis=-1, eps=1e-5):
    m = x.mean(dim=axis, keepdim=True)
    v = x.var(dim=axis, keepdim=True, unbiased=False)
    return (x - m) / torch.sqrt(v + eps)
def _scatter_add(tgt, idx, src, axis=0):
    return tgt.clone().index_add_(axis, idx, src)
def _segment_sum(src, seg, n):
    out = torch.zeros((n,) + src.shape[1:], dtype=src.dtype)
    return out.index_add_(0, seg, src)
def _pad(x, pw):
    flat = tuple(v for pair in reversed(pw) for v in pair)
    return torch.nn.functional.pad(x, flat)

kernel_name = 'interleave_layers__linear_kernel_hedgehog__mixer_channel_mlp__prompt'

def setup_inputs():

    _w = (lambda a: (lambda t: t.to(torch.bfloat16) if t.is_floating_point() else t)(torch.as_tensor(a)))
    def _A_setup():
        B, S, D, H = 1, 2048, 512, 32
        Dh = D // H
        return {
            "x": _w((lambda *s: torch.randn(*s, dtype=torch.bfloat16) * 0.05)(B, S, D)),
            "wqkv": _w((lambda *s: torch.randn(*s, dtype=torch.bfloat16) * 0.4)(D, 3 * D)),
            "w_phi": _w((lambda *s: torch.randn(*s, dtype=torch.bfloat16) * 0.4)(H, Dh, Dh) * (Dh ** -0.5)),
            "wo": _w((lambda *s: torch.randn(*s, dtype=torch.bfloat16) * 0.05)(D, D)),
        }
    _A_in = _A_setup()

    def _B_setup():
        B, S, D, F = 1, 2048, 512, 1376
        return {
            "x": _w((lambda *s: torch.randn(*s, dtype=torch.bfloat16) * 0.05)(B, S, D)),
            "w1": _w((lambda *s: torch.randn(*s, dtype=torch.bfloat16) * 3.2)(D, F) * (D ** -0.5)),
            "b1": _w((lambda *s: torch.randn(*s, dtype=torch.bfloat16) * 0.8)(F)),
            "w2": _w((lambda *s: torch.randn(*s, dtype=torch.bfloat16) * 0.8)(F, D) * (F ** -0.5)),
            "b2": _w((lambda *s: torch.randn(*s, dtype=torch.bfloat16) * 0.8)(D)),
        }
    _B_in = _B_setup()

    return {
        "A_x": _A_in["x"],
        "A_wqkv": _A_in["wqkv"],
        "A_w_phi": _A_in["w_phi"],
        "A_wo": _A_in["wo"],
        "B_x": _B_in["x"],
        "B_w1": _B_in["w1"],
        "B_b1": _B_in["b1"],
        "B_w2": _B_in["w2"],
        "B_b2": _B_in["b2"],
    }

def reference(A_x, A_wqkv, A_w_phi, A_wo, B_x, B_w1, B_b1, B_w2, B_b2):
    def _A_ref(x, wqkv, w_phi, wo):
        B, S, D = x.shape
        H = 32; Dh = D // H
        qkv = (lambda x, *d: x.permute(*d))((x @ wqkv).reshape(B, S, 3, H, Dh), 2, 0, 3, 1, 4)
        q, k, v = qkv[0], qkv[1], qkv[2]
        pq = torch.einsum("bhsd,hdf->bhsf", q, w_phi)
        pk = torch.einsum("bhsd,hdf->bhsf", k, w_phi)
        phi_q = torch.concatenate([_softmax(pq, axis=-1), _softmax(-pq, axis=-1)], axis=-1)
        phi_k = torch.concatenate([_softmax(pk, axis=-1), _softmax(-pk, axis=-1)], axis=-1)
        kv = torch.einsum("bhsf,bhsd->bhfd", phi_k, v)
        z  = torch.einsum("bhsf->bhf", phi_k)
        num = torch.einsum("bhqf,bhfd->bhqd", phi_q, kv)
        den = torch.einsum("bhqf,bhf->bhq", phi_q, z)[..., None] + 1e-6
        o = num / den
        return (lambda x, *d: x.permute(*d))(o, 0, 2, 1, 3).reshape(B, S, D) @ wo

    def _B_ref(x, w1, b1, w2, b2):
        y = _layernorm(x, axis=-1)
        h = _gelu(torch.einsum("bsd,df->bsf", y, w1) + b1)
        return torch.einsum("bsf,fd->bsd", h, w2) + b2

    x = A_x
    x = x + _A_ref(_layernorm(x, axis=-1), A_wqkv, A_w_phi, A_wo)
    x = x + _B_ref(_layernorm(x, axis=-1), B_w1, B_b1, B_w2, B_b2)
    x = x + _A_ref(_layernorm(x, axis=-1), A_wqkv, A_w_phi, A_wo)
    x = x + _B_ref(_layernorm(x, axis=-1), B_w1, B_b1, B_w2, B_b2)
    return x
```

```python
import re

REG_RE = re.compile(r'^(-?)(?:abs\()?([vas])(?:\[(\d+):(\d+)\]|(\d+))\)?$')

TRANS = ('v_exp_f32', 'v_log_f32', 'v_rcp_f32', 'v_rsq_f32', 'v_sqrt_f32', 'v_sin_f32', 'v_cos_f32')


def regs_of(tok):
    tok = tok.strip()
    if tok in ('vcc', 'exec', 'm0', 'scc'):
        return [tok]
    if tok in ('vcc_lo', 'vcc_hi'):
        return ['vcc']
    if tok in ('exec_lo', 'exec_hi'):
        return ['exec']
    m = REG_RE.match(tok)
    if not m:
        return []
    k = m.group(2)
    if m.group(3) is not None:
        return [f'{k}{i}' for i in range(int(m.group(3)), int(m.group(4)) + 1)]
    return [f'{k}{m.group(5)}']


class Ins:
    __slots__ = ('text', 'op', 'kind', 'dst', 'src', 'srcc', 'raw', 'target', 'passes', 'wide', 'dpp', 'data', 'note')

    def __init__(self, text, raw=False):
        self.text = text
        self.raw = raw
        self.target = None
        self.passes = 0
        self.wide = False
        self.dpp = False
        self.srcc = []
        self.data = []
        self.note = None
        self.parse()

    def parse(self):
        t = self.text.split(';')[0].strip()
        self.dst, self.src = [], []
        if not t or t.endswith(':') or t.startswith('.'):
            self.op, self.kind = t, 'dir'
            return
        parts = t.split(None, 1)
        op = parts[0]
        self.op = op
        rest = parts[1] if len(parts) > 1 else ''
        ops, cur, depth = [], '', 0
        for ch in rest:
            if ch in '[(':
                depth += 1
            if ch in '])':
                depth -= 1
            if ch == ',' and depth == 0:
                ops.append(cur.strip())
                cur = ''
            else:
                cur += ch
        if cur.strip():
            ops.append(cur.strip())
        mods = ''
        if ops:
            last = ops[-1].split(None, 1)
            ops[-1] = last[0]
            mods = last[1] if len(last) > 1 else ''
        R = [regs_of(o) for o in ops]
        flat = lambda L: [r for x in L for r in x]
        if op.startswith('v_mfma'):
            self.kind = 'mfma'
            self.dst = R[0]
            self.src = R[1] + R[2]
            self.srcc = R[3]
            self.passes = 8 if '32x32x16' in op or '32x32x8' in op else 4
        elif op.startswith('v_'):
            self.kind = 'valu'
            base = op.replace('_e32', '').replace('_e64', '').replace('_dpp', '')
            self.dpp = op.endswith('_dpp') or 'quad_perm' in mods or 'row_' in mods
            if base.startswith('v_permlane') and 'swap' in base:
                self.dst = R[0] + R[1]
                self.src = R[0] + R[1]
            elif base.startswith('v_cmp'):
                self.dst = R[0]
                self.src = flat(R[1:])
            elif base in ('v_add_co_u32', 'v_sub_co_u32', 'v_addc_co_u32', 'v_subb_co_u32'):
                self.dst = R[0] + R[1]
                self.src = flat(R[2:])
            else:
                self.dst = R[0]
                self.src = flat(R[1:])
                if base in ('v_fmac_f32', 'v_dot2c_f32_bf16', 'v_writelane_b32') or self.dpp:
                    self.src = self.src + R[0]
            if base == 'v_nop':
                self.dst, self.src = [], []
        elif op.startswith('buffer_') or op.startswith('global_'):
            self.kind = 'vmem'
            lds = bool(re.search(r'\blds\b', mods)) or 'load_lds' in op
            if 'load' in op and not lds:
                self.dst = R[0]
                self.src = flat(R[1:])
                if 'd16' in op:
                    self.src = self.src + R[0]
            elif 'load' in op and lds:
                self.src = flat(R) + ['m0']
            elif op.startswith('buffer_store') or op.startswith('buffer_atomic'):
                self.src = flat(R)
                self.data = R[0]
                self.wide = op.endswith('x4') or op.endswith('x3')
                if op.startswith('buffer_atomic') and re.search(r'\bsc0\b', mods):
                    self.dst = R[0]
            elif op.startswith('global_store'):
                self.src = flat(R)
                self.data = R[1]
                self.wide = op.endswith('x4') or op.endswith('x3')
            else:
                self.src = flat(R)
        elif op.startswith('ds_'):
            self.kind = 'ds'
            if op.startswith('ds_read') or op.startswith('ds_bpermute') or op.startswith('ds_swizzle'):
                self.dst = R[0]
                self.src = flat(R[1:])
            else:
                self.src = flat(R)
        elif op.startswith('s_'):
            self.kind = 'salu'
            if op in ('s_waitcnt', 's_nop', 's_barrier', 's_endpgm', 's_sleep', 's_setprio') or op.startswith('s_cbranch') or op == 's_branch':
                self.kind = 'ctl'
                if op.startswith('s_cbranch_vcc'):
                    self.src = ['vcc']
            elif op.startswith('s_load') or op in ('s_memtime', 's_memrealtime'):
                self.kind = 'smem'
                self.dst = R[0]
                self.src = flat(R[1:])
            elif op.startswith('s_cmp') or op.startswith('s_bitcmp'):
                self.src = flat(R)
                self.dst = ['scc']
            else:
                self.dst = R[0]
                self.src = flat(R[1:])
        else:
            raise ValueError('cannot parse: ' + self.text)


class WaitVM:
    def __init__(self, targets):
        self.targets = targets


class WaitLG:
    def __init__(self, targets=None):
        self.targets = targets


class Asm:
    def __init__(self):
        self.items = []

    def e(self, text, raw=False):
        i = Ins(text, raw)
        self.items.append(i)
        return i

    def raw(self, text):
        for line in text.strip('\n').split('\n'):
            self.items.append(Ins(line.strip(), True))

    def add(self, items):
        self.items.extend(items)

    def wait_vm(self, targets):
        if not isinstance(targets, (list, tuple)):
            targets = [targets]
        self.items.append(WaitVM(list(targets)))

    def wait_lg(self, targets=None):
        if targets is not None and not isinstance(targets, (list, tuple)):
            targets = [targets]
        self.items.append(WaitLG(targets))

    def comment(self, s):
        self.items.append(Ins('; ' + s))

    def finalize(self):
        out = []
        vmq, lgq = [], []
        hist = []
        stats = {'nops': 0, 'waits': 0, 'n': 0}

        def emit_wait(vm=None, lg=None):
            s = 's_waitcnt'
            if vm is not None:
                s += f' vmcnt({min(vm, 63)})'
            if lg is not None:
                s += f' lgkmcnt({min(lg, 15)})'
            w = Ins(s)
            out.append(s)
            hist.append((w, 1))
            stats['waits'] += 1

        def retire(q, n):
            if n < len(q):
                del q[:len(q) - n]

        def need_states(ins):
            need = 0
            dist = 0
            rd = set(ins.src) | set(ins.srcc)
            wr = set(ins.dst)
            base = ins.op.replace('_e32', '').replace('_e64', '').replace('_dpp', '')
            for p, st in reversed(hist):
                if dist >= 20:
                    break
                req = 0
                pd = set(p.dst)
                pbase = p.op.replace('_e32', '').replace('_e64', '').replace('_dpp', '')
                if p.kind == 'valu':
                    vd = {r for r in pd if r[0] in 'va' and r != 'vcc'}
                    sd = pd - vd
                    isdot = pbase.startswith('v_dot')
                    if ins.kind == 'mfma' and vd & rd:
                        req = max(req, 3 if isdot else 2)
                    if ins.kind == 'valu':
                        if pbase in TRANS and base not in TRANS and vd & rd:
                            req = max(req, 1)
                        if pbase in TRANS and base in TRANS and vd & rd:
                            req = max(req, 1)
                        if base.startswith('v_permlane') and vd & rd:
                            req = max(req, 2)
                        if ins.dpp and vd & rd:
                            req = max(req, 2)
                        if base in ('v_readlane_b32', 'v_readfirstlane_b32') and vd & rd:
                            req = max(req, 1)
                        if sd & rd:
                            req = max(req, 4 if base in ('v_readlane_b32', 'v_writelane_b32') else 2)
                        if isdot and vd & (rd | wr):
                            same_c = (base == pbase) and not (vd & set(ins.src[:-len(ins.dst)] if ins.dst else ins.src))
                            if not same_c:
                                req = max(req, 3)
                    if isdot and ins.kind in ('vmem', 'ds') and vd & (rd | wr):
                        req = max(req, 3)
                    if ins.kind == 'vmem' and sd & rd:
                        req = max(req, 5)
                    if ins.kind in ('salu', 'ctl', 'smem') and sd & rd:
                        req = max(req, 4)
                elif p.kind == 'mfma':
                    big = {4: 8, 8: 12}[p.passes]
                    if ins.kind == 'mfma':
                        if pd & set(ins.src):
                            req = max(req, big)
                        if pd & set(ins.srcc):
                            if ins.srcc == p.dst and ins.passes == p.passes:
                                pass
                            else:
                                req = max(req, big - 2)
                        elif pd & wr:
                            req = max(req, big)
                    elif ins.kind in ('valu', 'vmem', 'ds'):
                        if pd & (rd | wr):
                            req = max(req, big)
                        if ins.kind == 'valu' and set(p.srcc) & wr:
                            req = max(req, {4: 3, 8: 7}[p.passes])
                elif p.kind == 'vmem':
                    if p.wide and set(p.data) & wr:
                        req = max(req, 2)
                elif p.kind == 'salu':
                    if 'm0' in pd and 'm0' in rd and ins.kind == 'vmem':
                        req = max(req, 1)
                need = max(need, req - dist)
                dist += st
            return need

        for it in self.items:
            if isinstance(it, WaitVM):
                idx = [vmq.index(t) for t in it.targets if t in vmq]
                if idx:
                    n = len(vmq) - 1 - max(idx)
                    emit_wait(vm=n)
                    retire(vmq, min(n, 63))
                continue
            if isinstance(it, WaitLG):
                if it.targets is None:
                    if lgq:
                        emit_wait(lg=0)
                        lgq.clear()
                else:
                    idx = [lgq.index(t) for t in it.targets if t in lgq]
                    if idx:
                        n = len(lgq) - 1 - max(idx)
                        if any(x.kind == 'smem' for x in lgq):
                            n = 0
                        emit_wait(lg=n)
                        retire(lgq, min(n, 15))
                continue
            ins = it
            if ins.kind == 'dir':
                out.append(ins.text)
                continue
            if ins.raw:
                touch = set(ins.src) | set(ins.dst) | set(ins.srcc)
                for q in (vmq, lgq):
                    for p in q:
                        if set(p.dst) & touch:
                            raise RuntimeError(f'raw instr touches in-flight load dst: {ins.text} vs {p.text}')
                n = need_states(ins)
                if n > 0:
                    out.append(f's_nop {n - 1}')
                out.append(ins.text)
                hist.append((ins, 0))
                stats['n'] += 1
                continue
            touch = set(ins.src) | set(ins.dst) | set(ins.srcc)
            vm = lg = None
            for i, p in enumerate(vmq):
                if set(p.dst) & touch:
                    if ins.kind == 'vmem' and not (set(p.dst) & set(ins.src)):
                        continue
                    vm = len(vmq) - 1 - i
            for i, p in enumerate(lgq):
                if set(p.dst) & touch:
                    if ins.kind == 'ds' and p.kind == 'ds' and not (set(p.dst) & set(ins.src)):
                        continue
                    lg = len(lgq) - 1 - i
            if lg is not None and any(x.kind == 'smem' for x in lgq):
                lg = 0
            if vm is not None or lg is not None:
                emit_wait(vm, lg)
                if vm is not None:
                    retire(vmq, min(vm, 63))
                if lg is not None:
                    retire(lgq, min(lg, 15))
            if ins.op == 's_waitcnt':
                m = re.search(r'vmcnt\((\d+)\)', ins.text)
                if m:
                    retire(vmq, int(m.group(1)))
                m = re.search(r'lgkmcnt\((\d+)\)', ins.text)
                if m:
                    n = int(m.group(1))
                    if n == 0 or not any(x.kind == 'smem' for x in lgq):
                        retire(lgq, n)
            n = need_states(ins)
            if n > 0:
                out.append(f's_nop {n - 1}')
                hist.append((Ins(f's_nop {n - 1}'), n))
                stats['nops'] += 1
            out.append(ins.text)
            stats['n'] += 1
            st = 1
            if ins.op == 's_nop':
                st = int(ins.text.split()[1], 0) + 1
            hist.append((ins, st))
            if len(hist) > 64:
                del hist[:32]
            if ins.kind == 'vmem':
                vmq.append(ins)
            elif ins.kind in ('ds', 'smem'):
                lgq.append(ins)
        return out, stats


def interleave(main, fill, start=0, end=None, per=None):
    pos = [i for i, x in enumerate(main) if isinstance(x, Ins) and x.kind == 'mfma']
    if end is None:
        end = len(pos)
    slots = pos[start:end]
    if not fill:
        return list(main)
    out = []
    n = len(slots)
    k = 0
    slotset = {p: i for i, p in enumerate(slots)}
    for i, x in enumerate(main):
        out.append(x)
        if i in slotset:
            j = slotset[i]
            if per is None:
                tgt = (len(fill) * (j + 1) + n - 1) // n
            else:
                tgt = min(len(fill), per * (j + 1))
            while k < tgt:
                out.append(fill[k])
                k += 1
    out.extend(fill[k:])
    return out
```

```python
import sys, struct
sys.path.insert(0, 'tools')
from asmfw import Asm, Ins, interleave

NAME = 'interleave_layers__linear_kernel_hedgehog__mixer_channel_mlp__prompt'
PROFILE = '--profile' in sys.argv
OUTFILE = [a for a in sys.argv[1:] if not a.startswith('--')]
OUTFILE = OUTFILE[0] if OUTFILE else f'cdna_kernels/{NAME}.s'


def f32(x):
    return '0x%08x' % struct.unpack('<I', struct.pack('<f', x))[0]


KB = 1024
WS = {}
_off = 0
def alloc(name, size):
    global _off
    WS[name] = _off
    _off += (size + 4095) // 4096 * 4096
alloc('FLAG', 8 * 32 * 128)
alloc('KVC', 2 * 8 * 8 * 128)
alloc('WQKV', 32 * 3 * 16 * KB)
alloc('W1', 86 * 16 * KB)
alloc('WO', 8 * 16 * 4 * KB)
alloc('W2', 8 * 43 * 4 * KB)
alloc('XF', 3 * 32 * 64 * KB)
alloc('ST', 3 * 32 * 4 * KB)
alloc('OF', 2 * 32 * 64 * KB)
alloc('HF', 2 * 32 * 86 * 2 * KB)
alloc('KVP', 2 * 32 * 32 * KB)
alloc('ZP', 2 * 32 * 4 * KB)
alloc('PROF', 1024 * 256)
WS_USED = _off
OOB = 0x70000000

L_ACT, L_WOW, L_TS, L_STAT = 0, 64 * KB, 128 * KB, 144 * KB
LDS_BYTES = 148 * KB

SC = ' sc1'


def v(i, n=1):
    return f'v{i}' if n == 1 else f'v[{i}:{i + n - 1}]'
def a_(i, n=1):
    return f'a{i}' if n == 1 else f'a[{i}:{i + n - 1}]'
def s(i, n=1):
    return f's{i}' if n == 1 else f's[{i}:{i + n - 1}]'


def gen_prep():
    A = Asm()
    e = A.e
    e('s_cmp_ge_u32 s2, 600')
    e('s_cbranch_scc1 P_done')
    e('s_load_dwordx2 s[4:5], s[0:1], 8')
    e('s_load_dwordx2 s[6:7], s[0:1], 24')
    e('s_load_dwordx2 s[8:9], s[0:1], 40')
    e('s_load_dwordx2 s[10:11], s[0:1], 56')
    e('s_load_dwordx2 s[16:17], s[0:1], 88')
    e('v_lshrrev_b32 v1, 6, v0')
    e('v_and_b32 v2, 63, v0')
    e('v_readfirstlane_b32 s3, v1')
    e('v_and_b32 v3, 15, v2')
    e('v_lshrrev_b32 v4, 4, v2')
    e('v_lshlrev_b32 v5, 4, v2')
    e('s_lshl_b32 s20, s2, 2')
    e('s_add_u32 s20, s20, s3')
    e('s_mov_b32 s18, %d' % WS_USED)
    e('s_mov_b32 s19, 0x20000')
    e('s_mov_b32 s15, 0x20000')
    e('s_waitcnt lgkmcnt(0)')
    e('s_cmp_ge_u32 s2, %d' % (WS['WQKV'] // 1024))
    e('s_cbranch_scc1 P_nozero')
    A.raw('''
    s_lshl_b32 s21, s2, 10
    v_lshlrev_b32 v6, 2, v0
    v_mov_b32 v7, 0
    buffer_store_dword v7, v6, s[16:19], s21 offen
    ''')
    e('P_nozero:')
    e('s_cmp_lt_u32 s20, 768')
    e('s_cbranch_scc1 P_qkv')
    e('s_cmp_lt_u32 s20, %d' % (768 + 688))
    e('s_cbranch_scc1 P_w1')
    e('s_cmp_lt_u32 s20, %d' % (768 + 688 + 256))
    e('s_cbranch_scc1 P_wo')
    A.raw(f'''
    s_sub_u32 s20, s20, {768 + 688 + 256}
    s_and_b32 s21, s20, 15
    s_lshr_b32 s22, s20, 4
    s_mov_b32 s12, s10
    s_mov_b32 s13, s11
    s_mov_b32 s14, {1376 * 1024}
    s_mov_b32 s23, 1024
    s_mov_b32 s24, 2048
    v_and_b32 v6, 1, v4
    v_lshlrev_b32 v6, 4, v6
    v_lshrrev_b32 v7, 1, v4
    v_add_u32 v6, v6, v7
    s_lshr_b32 s25, s21, 1
    s_mul_i32 s25, s25, 43
    s_add_u32 s25, s25, s22
    s_lshl_b32 s25, s25, 12
    s_and_b32 s26, s21, 1
    s_lshl_b32 s26, s26, 11
    s_add_u32 s25, s25, s26
    s_add_u32 s25, s25, {WS['W2']}
    v_add_u32 v8, s25, v5
    v_add_u32 v9, 1024, v8
    s_branch P_go
    P_wo:
    s_sub_u32 s20, s20, {768 + 688}
    s_and_b32 s21, s20, 15
    s_lshr_b32 s22, s20, 4
    s_mov_b32 s12, s6
    s_mov_b32 s13, s7
    s_mov_b32 s14, {512 * 1024}
    s_mov_b32 s23, 1024
    s_mov_b32 s24, 2048
    v_lshrrev_b32 v6, 1, v4
    v_lshlrev_b32 v6, 4, v6
    v_and_b32 v7, 1, v4
    v_add_u32 v6, v6, v7
    s_lshr_b32 s25, s21, 1
    s_lshl_b32 s25, s25, 4
    s_add_u32 s25, s25, s22
    s_lshl_b32 s25, s25, 12
    s_and_b32 s26, s21, 1
    s_lshl_b32 s26, s26, 11
    s_add_u32 s25, s25, s26
    s_add_u32 s25, s25, {WS['WO']}
    v_add_u32 v8, s25, v5
    v_add_u32 v9, 1024, v8
    s_branch P_go
    P_w1:
    s_sub_u32 s20, s20, 768
    s_lshr_b32 s21, s20, 4
    s_and_b32 s22, s20, 15
    s_mov_b32 s12, s8
    s_mov_b32 s13, s9
    s_mov_b32 s14, {512 * 2752}
    s_mov_b32 s23, 2752
    s_mov_b32 s24, 2752
    v_lshlrev_b32 v6, 3, v4
    s_lshl_b32 s25, s21, 5
    s_add_u32 s25, s25, s22
    s_lshl_b32 s25, s25, 10
    s_add_u32 s25, s25, {WS['W1']}
    v_add_u32 v8, s25, v5
    v_add_u32 v9, 16384, v8
    s_branch P_go
    P_qkv:
    s_lshr_b32 s21, s20, 4
    s_and_b32 s22, s20, 15
    s_mov_b32 s12, s4
    s_mov_b32 s13, s5
    s_mov_b32 s14, {512 * 3072}
    s_mov_b32 s23, 3072
    s_mov_b32 s24, 3072
    v_lshlrev_b32 v6, 3, v4
    s_lshr_b32 s26, s21, 4
    s_add_u32 s26, s26, 2
    s_cmp_ge_u32 s26, 3
    s_cselect_b32 s27, 3, 0
    s_sub_u32 s26, s26, s27
    s_and_b32 s25, s21, 15
    s_mul_i32 s25, s25, 6
    s_add_u32 s25, s25, s26
    s_lshl_b32 s25, s25, 4
    s_add_u32 s25, s25, s22
    s_lshl_b32 s25, s25, 10
    s_add_u32 s25, s25, {WS['WQKV']}
    v_lshrrev_b32 v7, 3, v3
    v_mul_u32_u24 v7, 49152, v7
    v_and_b32 v8, 7, v3
    v_lshlrev_b32 v8, 4, v8
    v_lshl_add_u32 v8, v4, 8, v8
    v_add3_u32 v8, v8, v7, s25
    v_add_u32 v9, 128, v8
    P_go:
    ''')
    e('s_lshl_b32 s26, s22, 5')
    e('v_add_u32 v6, s26, v6')
    e('v_mul_lo_u32 v6, v6, s23')
    e('s_lshl_b32 s26, s21, 6')
    e('v_lshl_add_u32 v6, v3, 2, v6')
    e('v_add_u32 v6, s26, v6')
    e('s_mov_b32 s28, 0')
    for k in range(8):
        e(f'buffer_load_dword v{10 + k}, v6, s[12:15], s28 offen')
        if k < 7:
            e('s_add_u32 s28, s28, s24')
    e('s_mov_b32 s26, 0x05040100')
    e('s_mov_b32 s27, 0x07060302')
    for m in range(4):
        e(f'v_perm_b32 v{20 + m}, v{11 + 2 * m}, v{10 + 2 * m}, s26')
    for m in range(4):
        e(f'v_perm_b32 v{24 + m}, v{11 + 2 * m}, v{10 + 2 * m}, s27')
    e('buffer_store_dwordx4 v[20:23], v8, s[16:19], 0 offen')
    e('buffer_store_dwordx4 v[24:27], v9, s[16:19], 0 offen')
    e('P_done:')
    e('s_endpgm')
    return A


SRD_WS, SRD_X, SRD_OUT, SRD_PHI, SRD_B1, SRD_B2 = 4, 8, 12, 16, 20, 24
sW, sJ, sRB, sH, sX, sWG = 28, 29, 30, 31, 32, 33
sT0, sT1, sT2, sT3 = 34, 35, 36, 37
sCNT, sLAST = 38, 39
sONE = 40
sMASKHI = 41
sTM = 42
sRB64K = 44
sK0 = 47
sM = 64
sC1, sC2 = 72, 74

vL16, vGATH, vXR, vSTAMP = 1, 2, 3, 4
vA0, vA1, vA2, vA3 = 5, 6, 7, 0
RES = 8
WB = 16
ONES = 24
XS0 = [('a', 176 + 4 * k) for k in range(16)]
XS1 = [('v', 144 + 4 * k) for k in range(12)] + [('a', 240 + 4 * k) for k in range(4)]
XS2 = [('v', 192 + 4 * k) for k in range(16)]
XS = [XS0, XS1, XS2]
SPARSE = 144
XB = 192


def R4(t):
    return f'{t[0]}[{t[1]}:{t[1] + 3}]'


def K(k):
    return '0' if k == 0 else f's{sK0 + k}'


def mfma(d, a, b, c=None):
    c = d if c is None else c
    return Ins(f'v_mfma_f32_16x16x32_bf16 {d}, {a}, {b}, {c}')


class Main:
    def __init__(self):
        self.A = Asm()
        self.nstamp = 0
        self.lbl = 0
        self.names = []

    def e(self, t):
        return self.A.e(t)

    def stamp(self, name):
        if not PROFILE:
            return
        self.names.append(name)
        self.e(f's_memtime s[{sTM}:{sTM + 1}]')
        self.e('s_waitcnt lgkmcnt(0)')
        self.e(f'v_writelane_b32 v{vSTAMP}, s{sTM}, {self.nstamp}')
        self.nstamp += 1

    def rstamp(self, idx):
        if not PROFILE:
            return
        self.e(f's_memrealtime s[{sTM}:{sTM + 1}]')
        self.e('s_waitcnt lgkmcnt(0)')
        self.e(f'v_writelane_b32 v{vSTAMP}, s{sTM}, {idx}')

    def label(self):
        self.lbl += 1
        return f'L{self.lbl}'

    def signal(self, stores, seam):
        A = self.A
        A.wait_vm(stores)
        A.wait_lg()
        self.e('s_barrier')
        L = self.label()
        self.e(f's_cmp_lg_u32 s{sW}, 0')
        self.e(f's_cbranch_scc1 {L}')
        A.raw(f'''
        s_lshl_b32 s{sT0}, s{sRB}, 7
        s_lshl_b32 s{sT1}, s{sJ}, 2
        s_add_u32 s{sT0}, s{sT0}, s{sT1}
        s_add_u32 s{sT0}, s{sT0}, {WS['FLAG'] + seam * 4096}
        v_mov_b32 v{vA0}, s{sT0}
        v_mov_b32 v{vA1}, 1
        s_mov_b64 exec, 1
        buffer_store_dword v{vA1}, v{vA0}, s[{SRD_WS}:{SRD_WS + 3}], 0 offen{SC}
        s_mov_b64 exec, -1
        {L}:
        ''')

    def poll(self, setup, expect):
        A = self.A
        L, Lp = self.label(), self.label()
        self.e(f's_cmp_lg_u32 s{sW}, 0')
        self.e(f's_cbranch_scc1 {L}')
        A.raw(setup)
        A.raw(f'''
        s_mov_b32 s{sCNT}, 0
        {Lp}:
        buffer_load_dword v{vA1}, v{vA0}, s[{SRD_WS}:{SRD_WS + 3}], 0 offen sc1
        s_add_u32 s{sCNT}, s{sCNT}, 1
        s_cmp_gt_u32 s{sCNT}, 0x40000
        s_cbranch_scc1 {L}x
        s_waitcnt vmcnt(0)
        v_cmp_ne_u32 vcc, {expect}, v{vA1}
        s_nop 4
        s_cbranch_vccnz {Lp}
        {L}x:
        s_waitcnt vmcnt(0)
        s_mov_b64 exec, -1
        {L}:
        ''')
        self.e('s_barrier')

    def wait_flags(self, seam):
        self.poll(f'''
        s_lshl_b32 s{sT0}, s{sRB}, 7
        s_add_u32 s{sT0}, s{sT0}, {WS['FLAG'] + seam * 4096}
        v_lshrrev_b32 v{vA0}, 2, v{vL16}
        v_add_u32 v{vA0}, s{sT0}, v{vA0}
        s_mov_b64 exec, 0xff
        ''', 1)

    def signal_kv(self, stores, L_):
        A = self.A
        A.wait_vm(stores)
        A.wait_lg()
        self.e('s_barrier')
        L = self.label()
        self.e(f's_cmp_lg_u32 s{sW}, 0')
        self.e(f's_cbranch_scc1 {L}')
        A.raw(f'''
        s_lshl_b32 s{sT0}, s{sJ}, 10
        s_add_u32 s{sT0}, s{sT0}, {WS['KVC'] + L_ * 8192}
        v_lshlrev_b32 v{vA0}, 3, v{vL16}
        v_add_u32 v{vA0}, s{sT0}, v{vA0}
        v_mov_b32 v{vA1}, 1
        s_mov_b64 exec, 0xff
        buffer_atomic_add v{vA1}, v{vA0}, s[{SRD_WS}:{SRD_WS + 3}], 0 offen sc1
        s_mov_b64 exec, -1
        {L}:
        ''')

    def wait_kv(self, L_):
        self.poll(f'''
        s_lshl_b32 s{sT0}, s{sJ}, 10
        s_lshl_b32 s{sT1}, s{sX}, 7
        s_add_u32 s{sT0}, s{sT0}, s{sT1}
        s_add_u32 s{sT0}, s{sT0}, {WS['KVC'] + L_ * 8192}
        v_mov_b32 v{vA0}, s{sT0}
        s_mov_b64 exec, 1
        ''', 32)

    def ld(self, dst, voff, k, imm, sc=''):
        o = f' offset:{imm}' if imm else ''
        so = k if isinstance(k, str) else K(k)
        return Ins(f'buffer_load_dwordx4 {dst}, v{voff}, s[{SRD_WS}:{SRD_WS + 3}], {so} offen{o}{sc}')

    def load_wqkv(self, part, va):
        out = [Ins(f's_mul_i32 s{sT0}, s{sH}, 49152'),
               Ins(f's_add_u32 s{sT0}, s{sT0}, {WS["WQKV"] + part * 16384}'),
               Ins(f'v_add_u32 v{va}, s{sT0}, v{vL16}')]
        for ks in range(16):
            out.append(self.ld(R4(XS[part][ks]), va, ks >> 2, (ks & 3) * 1024))
        return out

    def load_w1(self, t, va):
        out = [Ins(f's_lshl_b32 s{sT0}, s{sH}, 14'),
               Ins(f's_add_u32 s{sT0}, s{sT0}, {WS["W1"] + t * 32 * 16384}')]
        if t == 2:
            out += [Ins(f's_cmp_lt_u32 s{sH}, 22'), Ins(f's_cselect_b32 s{sT0}, s{sT0}, {OOB}')]
        out.append(Ins(f'v_add_u32 v{va}, s{sT0}, v{vL16}'))
        for ks in range(16):
            out.append(self.ld(R4(XS[t][ks]), va, ks >> 2, (ks & 3) * 1024))
        return out

    def load_w2(self, va, vb):
        out = [Ins(f's_mul_i32 s{sT0}, s{sJ}, 43'),
               Ins(f's_mul_i32 s{sT1}, s{sW}, 11'),
               Ins(f's_add_u32 s{sT0}, s{sT0}, s{sT1}'),
               Ins(f's_lshl_b32 s{sT0}, s{sT0}, 12'),
               Ins(f's_add_u32 s{sT0}, s{sT0}, {WS["W2"]}'),
               Ins(f'v_add_u32 v{va}, s{sT0}, v{vL16}'),
               Ins(f's_cmp_lt_u32 s{sW}, 3'),
               Ins(f's_cselect_b32 s{sT0}, s{sT0}, {OOB}'),
               Ins(f'v_add_u32 v{vb}, s{sT0}, v{vL16}')]
        for i in range(11):
            for T in range(4):
                out.append(self.ld(a_(16 * i + 4 * T, 4), va if i < 10 else vb, i, T * 1024))
        return out

    def load_wo_lds(self, va):
        out = [Ins(f's_lshl_b32 s{sT0}, s{sH}, 14'),
               Ins(f's_add_u32 s{sT0}, s{sT0}, {WS["WO"]}'),
               Ins(f'v_add_u32 v{va}, s{sT0}, v{vL16}'),
               Ins(f's_lshl_b32 s{sT1}, s{sW}, 14')]
        dm = []
        for q in range(4):
            out.append(Ins(f's_add_u32 m0, s{sT1}, {L_WOW + q * 4096}'))
            for n in range(4):
                o = f' offset:{n * 1024}' if n else ''
                i = Ins(f'buffer_load_dwordx4 v{va}, s[{SRD_WS}:{SRD_WS + 3}], {K(q)} offen{o} lds')
                out.append(i)
                dm.append(i)
        return out, dm

    def dma_x(self, inst):
        out, toks = [], []
        va = vA0
        out.append(Ins(f's_lshl_b32 s{sT1}, s{sW}, 12'))
        if inst < 0:
            o = out.append
            o(Ins(f'v_lshrrev_b32 v{vA1}, 8, v{vL16}'))
            o(Ins(f'v_lshrrev_b32 v{vA2}, 1, v{vA1}'))
            o(Ins(f'v_xor_b32 v{vA1}, v{vA1}, v{vA2}'))
            o(Ins(f'v_and_b32 v{vA1}, 1, v{vA1}'))
            o(Ins(f'v_lshl_or_b32 v{vA1}, v{vA1}, 1, v{vA2}'))
            o(Ins(f'v_lshlrev_b32 v{vA1}, 4, v{vA1}'))
            o(Ins(f'v_and_b32 v{vA2}, 48, v{vL16}'))
            o(Ins(f'v_xor_b32 v{vA1}, v{vA1}, v{vA2}'))
            o(Ins(f'v_lshrrev_b32 v{vA2}, 6, v{vL16}'))
            o(Ins(f'v_lshl_add_u32 v{vA1}, v{vA2}, 10, v{vA1}'))
            o(Ins(f's_lshl_b32 s{sT0}, s{sW}, 8'))
            o(Ins(f's_add_u32 s{sT0}, s{sT0}, s{sRB64K}'))
            o(Ins(f'v_add_u32 v{va}, s{sT0}, v{vA1}'))
            for tt in range(4):
                for n in range(4):
                    o(Ins(f's_add_u32 m0, s{sT1}, {L_ACT + tt * 16384 + n * 1024 - n * 64}'))
                    of = f' offset:{n * 64}' if n else ''
                    i = Ins(f'buffer_load_dwordx4 v{va}, s[{SRD_X}:{SRD_X + 3}], {K(4 * tt)} offen{of} lds')
                    o(i)
                toks.append(i)
        else:
            out.append(Ins(f's_add_u32 s{sT0}, s{sT1}, s{sRB64K}'))
            out.append(Ins(f's_add_u32 s{sT0}, s{sT0}, {WS["XF"] + inst * 2048 * KB}'))
            out.append(Ins(f'v_add_u32 v{va}, s{sT0}, v{vL16}'))
            for tt in range(4):
                out.append(Ins(f's_add_u32 m0, s{sT1}, {L_ACT + tt * 16384}'))
                for n in range(4):
                    of = f' offset:{n * 1024}' if n else ''
                    i = Ins(f'buffer_load_dwordx4 v{va}, s[{SRD_WS}:{SRD_WS + 3}], {K(4 * tt)} offen{of}{SC} lds')
                    out.append(i)
                toks.append(i)
        return out, toks

    def stats_finish(self, S, Q, T, vq, vc, double_ln):
        e = self.e
        e(f'v_mul_f32 v{S}, {f32(-1.0 / 512)}, v{S}')
        e(f'v_mul_f32 v{T}, v{S}, v{S}')
        e(f'v_mov_b32 v{T + 1}, {f32(1.0 / 512)}')
        e(f'v_fma_f32 v{Q}, v{Q}, v{T + 1}, -v{T}')
        e(f'v_max_f32 v{Q}, 0, v{Q}')
        e(f'v_add_f32 v{T}, {f32(1e-5)}, v{Q}')
        e(f'v_rsq_f32 v{T}, v{T}')
        if double_ln:
            e(f'v_mul_f32 v{T + 1}, v{T}, v{T}')
            e(f'v_fmaak_f32 v{T + 1}, v{T + 1}, v{Q}, {f32(1e-5)}')
            e(f'v_rsq_f32 v{T + 1}, v{T + 1}')
            e(f'v_mul_f32 v{T}, v{T}, v{T + 1}')
        e(f's_lshl_b32 s{sT0}, s{sW}, 2')
        e(f's_lshl_b32 s{sT1}, s{sW}, 6')
        e(f'v_lshl_add_u32 v{T + 1}, v{vc}, 4, s{sT0}')
        e(f'v_lshl_add_u32 v{T + 2}, v{vc}, 2, s{sT1}')
        e(f'v_cmp_gt_u32 vcc, 2, v{vq}')
        e(f'v_cndmask_b32 v{T + 1}, v{T + 2}, v{T + 1}, vcc')
        e(f'v_lshl_add_u32 v{T + 1}, v{vq}, 8, v{T + 1}')
        e(f'v_add_u32 v{T + 1}, {L_STAT}, v{T + 1}')
        e(f'v_and_b32 v{T + 2}, 1, v{vq}')
        e(f'v_cmp_eq_u32 vcc, 0, v{T + 2}')
        e(f'v_cndmask_b32 v{T}, v{T}, v{S}, vcc')
        e(f'ds_write_b32 v{T + 1}, v{T}')

    def stats_load(self, inst, T):
        out = [Ins(f's_lshl_b32 s{sT0}, s{sRB}, 12'),
               Ins(f's_lshl_b32 s{sT1}, s{sW}, 10'),
               Ins(f's_add_u32 s{sT0}, s{sT0}, s{sT1}'),
               Ins(f's_add_u32 s{sT0}, s{sT0}, {WS["ST"] + inst * 128 * KB}'),
               Ins(f'buffer_load_dwordx4 {v(T, 4)}, v{vL16}, s[{SRD_WS}:{SRD_WS + 3}], s{sT0} offen{SC}')]
        return out

    def stats_combine(self, T, double_ln):
        e = self.e
        e(f'v_add_f32 v{T}, v{T}, v{T + 2}')
        e(f'v_add_f32 v{T + 1}, v{T + 1}, v{T + 3}')
        e(f'v_bfe_u32 v{T + 8}, v{vL16}, 4, 2')
        e(f'v_lshrrev_b32 v{T + 9}, 6, v{vL16}')
        for p in ('[1,0,3,2]', '[2,3,0,1]'):
            e(f'v_add_f32_dpp v{T}, v{T}, v{T} quad_perm:{p} row_mask:0xf bank_mask:0xf')
            e(f'v_add_f32_dpp v{T + 1}, v{T + 1}, v{T + 1} quad_perm:{p} row_mask:0xf bank_mask:0xf')
        self.stats_finish(T, T + 1, T + 2, T + 8, T + 9, double_ln)

    def stats_x0(self, T):
        e = self.e
        e(f's_lshl_b32 s{sT0}, s{sW}, 14')
        e(f'v_add_u32 v{vA0}, s{sT0}, v{vXR}')
        F = T + 12
        for ks in range(16):
            e(f'ds_read_b128 {v(F + 4 * ks, 4)}, v{vA0} offset:{L_ACT + ks * 1024}')
        e(f'v_mov_b32 v{T}, 0')
        e(f'v_mov_b32 v{T + 1}, 0')
        for r in range(64):
            e(f'v_dot2_f32_bf16 v{T}, v{F + r}, s{sONE}, v{T}')
            e(f'v_dot2_f32_bf16 v{T + 1}, v{F + r}, v{F + r}, v{T + 1}')
        for sw in ('v_permlane32_swap_b32', 'v_permlane16_swap_b32'):
            e(f'v_mov_b32 v{T + 2}, v{T}')
            e(f'v_mov_b32 v{T + 3}, v{T + 1}')
            e(f'{sw} v{T}, v{T + 2}')
            e(f'{sw} v{T + 1}, v{T + 3}')
            e(f'v_add_f32 v{T}, v{T}, v{T + 2}')
            e(f'v_add_f32 v{T + 1}, v{T + 1}, v{T + 3}')
        e(f'v_lshrrev_b32 v{T + 8}, 8, v{vL16}')
        e(f'v_bfe_u32 v{T + 9}, v{vL16}, 4, 4')
        self.stats_finish(T, T + 1, T + 2, T + 8, T + 9, False)

    def lds_pass(self, vaddr, RING, NR, D, steps, toks=None):
        from asmfw import WaitVM, WaitLG
        out = []
        seen = set()

        def rd(i):
            tt, ks, _ = steps[i]
            if toks is not None and tt not in seen:
                seen.add(tt)
                out.append(WaitVM([toks[tt]]))
                if len(seen) == 1:
                    out.append(WaitLG(None))
                out.append(Ins('s_barrier'))
            out.append(Ins(f'ds_read_b128 {v(RING + 4 * (i % NR), 4)}, v{vaddr} offset:{L_ACT + (tt * 16 + ks) * 1024}'))
        for i in range(min(D, len(steps))):
            rd(i)
        for i, (tt, ks, fns) in enumerate(steps):
            b = v(RING + 4 * (i % NR), 4)
            for n, fn in enumerate(fns):
                out.append(fn(b))
                if n == 0 and i + D < len(steps):
                    rd(i + D)
        return out

    def phi(self, ACC, CS, NMU, RSL, KP, P, E, T, dstmap):
        e = self.e
        for tt in range(4):
            for h in range(2):
                sel = tt & 1
                e(f'v_pk_fma_f32 {v(ACC + 4 * tt + 2 * h, 2)}, {v(CS + 2 * h, 2)}, {v(NMU + (tt & 2), 2)}, {v(ACC + 4 * tt + 2 * h, 2)} op_sel:[0,{sel},0] op_sel_hi:[1,{sel},1]')
        for i in range(8):
            e(f'v_cvt_pk_bf16_f32 v{KP + i}, v{ACC + 2 * i}, v{ACC + 2 * i + 1}')
        for m in range(2):
            for u in range(4):
                self.A.add([mfma(v(P + 4 * u, 4), v(SPARSE + 8 * u + 4 * m, 4), v(KP + 4 * m, 4), '0' if m == 0 else None)])
        return

    def softmax(self, RSL, P, E, T, dstmap):
        e = self.e
        MX, MN, CB, CN = T, T + 1, T + 2, T + 4
        e(f'v_mul_f32 v{CB}, {f32(1.4426950408889634)}, v{RSL}')
        e(f'v_max3_f32 v{MX}, v{P}, v{P + 1}, v{P + 2}')
        e(f'v_min3_f32 v{MN}, v{P}, v{P + 1}, v{P + 2}')
        for i in range(3, 15, 2):
            e(f'v_max3_f32 v{MX}, v{MX}, v{P + i}, v{P + i + 1}')
            e(f'v_min3_f32 v{MN}, v{MN}, v{P + i}, v{P + i + 1}')
        e(f'v_max_f32 v{MX}, v{MX}, v{P + 15}')
        e(f'v_min_f32 v{MN}, v{MN}, v{P + 15}')
        e(f'v_sub_f32 v{CN}, 0, v{CB}')
        e(f'v_mul_f32 v{CB + 1}, v{MX}, v{CN}')
        e(f'v_mul_f32 v{CN + 1}, v{MN}, v{CB}')
        for i in range(0, 16, 2):
            e(f'v_pk_fma_f32 {v(E + i, 2)}, {v(P + i, 2)}, {v(CB, 2)}, {v(CB, 2)} op_sel:[0,0,1] op_sel_hi:[1,0,1]')
            e(f'v_pk_fma_f32 {v(P + i, 2)}, {v(P + i, 2)}, {v(CN, 2)}, {v(CN, 2)} op_sel:[0,0,1] op_sel_hi:[1,0,1]')
        for i in range(16):
            e(f'v_exp_f32 v{E + i}, v{E + i}')
        for i in range(16):
            e(f'v_exp_f32 v{P + i}, v{P + i}')
        e(f'v_pk_add_f32 {v(CB, 2)}, {v(E, 2)}, {v(E + 2, 2)}')
        e(f'v_pk_add_f32 {v(CN, 2)}, {v(P, 2)}, {v(P + 2, 2)}')
        for i in range(4, 16, 2):
            e(f'v_pk_add_f32 {v(CB, 2)}, {v(CB, 2)}, {v(E + i, 2)}')
            e(f'v_pk_add_f32 {v(CN, 2)}, {v(CN, 2)}, {v(P + i, 2)}')
        e(f'v_add_f32 v{CB}, v{CB}, v{CB + 1}')
        e(f'v_add_f32 v{CN}, v{CN}, v{CN + 1}')
        e(f'v_rcp_f32 v{CB}, v{CB}')
        e(f'v_rcp_f32 v{CN}, v{CN}')
        for i in range(0, 16, 2):
            e(f'v_pk_mul_f32 {v(E + i, 2)}, {v(E + i, 2)}, {v(CB, 2)} op_sel_hi:[1,0]')
        for i in range(0, 16, 2):
            e(f'v_pk_mul_f32 {v(P + i, 2)}, {v(P + i, 2)}, {v(CN, 2)} op_sel_hi:[1,0]')
        for i in range(8):
            e(f'v_cvt_pk_bf16_f32 v{dstmap(0, i)}, v{E + 2 * i}, v{E + 2 * i + 1}')
        for i in range(8):
            e(f'v_cvt_pk_bf16_f32 v{dstmap(1, i)}, v{P + 2 * i}, v{P + 2 * i + 1}')

    def phase_qkv(self, L_):
        A, e = self.A, self.e
        ACC, ACV, RING, CSK, CSV, CSQ = 28, 44, 60, 80, 84, 88
        NMU, RSL, T = 92, 96, 98
        P, E, PK = 104, 120, 60
        KP, VP = 136, 76
        NR, D = 5, 4
        if L_ == 0:
            toks = self.x0_toks
            A.wait_vm(toks)
            e('s_barrier')
            self.stats_x0(28)
            for i in range(8):
                e(f'v_lshl_or_b32 v{WB + i}, v{112 + i}, 16, v{104 + i}')
            xr = vXR
            us_toks = None
            A.wait_lg()
            e('s_barrier')
            self.stamp('x0stats')
        else:
            self.wait_flags(3)
            self.stamp('x2wait')
            A.add(self.stats_load(1, 104))
            it, toks = self.dma_x(1)
            A.add(it)
            self.stats_combine(104, False)
            xr = vL16
            us_toks = toks
        one = v(ONES, 4)
        cs = []
        for ks in range(16):
            cs.append(mfma(v(CSK, 4), R4(XS0[ks]), one, '0' if ks == 0 else None))
            cs.append(mfma(v(CSV, 4), one, R4(XS1[ks]), '0' if ks == 0 else None))
        steps = []
        if L_ == 0:
            for ks in range(16):
                for tt in range(4):
                    c0 = '0' if ks == 0 else None
                    fns = [lambda b, tt=tt, ks=ks, c0=c0: mfma(v(ACC + 4 * tt, 4), R4(XS0[ks]), b, c0),
                           lambda b, tt=tt, ks=ks, c0=c0: mfma(v(ACV + 4 * tt, 4), b, R4(XS1[ks]), c0)]
                    if tt == 3:
                        fns += [lambda b, ks=ks: cs[2 * ks], lambda b, ks=ks: cs[2 * ks + 1]]
                    steps.append((tt, ks, fns))
        else:
            A.add(cs)
            for tt in range(4):
                for ks in range(16):
                    c0 = '0' if ks == 0 else None
                    steps.append((tt, ks, [lambda b, tt=tt, ks=ks, c0=c0: mfma(v(ACC + 4 * tt, 4), R4(XS0[ks]), b, c0),
                                           lambda b, tt=tt, ks=ks, c0=c0: mfma(v(ACV + 4 * tt, 4), b, R4(XS1[ks]), c0)]))
        body = self.lds_pass(xr, RING, NR, D, steps, us_toks)
        A.add(body)
        self.stamp('kvpass')
        e(f'v_and_b32 v{vA0}, 0xf0, v{vL16}')
        e(f'v_add_u32 v{vA0}, {L_STAT}, v{vA0}')
        e(f'v_lshrrev_b32 v{vA1}, 8, v{vL16}')
        e(f'ds_read_b128 {v(NMU, 4)}, v{vA0}')
        e(f'v_lshl_add_u32 v{vA0}, v{vA1}, 2, v{vA0}')
        e(f'ds_read_b32 v{RSL}, v{vA0} offset:256')
        e(f'v_lshlrev_b32 v{vA1}, 4, v{vA1}')
        e(f'v_add_u32 v{vA1}, {L_STAT + 512}, v{vA1}')
        for tt in range(4):
            e(f'ds_read_b128 {v(E + 4 * tt, 4)}, v{vA1} offset:{tt * 64}')
        for tt in range(4):
            e(f'ds_read_b128 {v(RING + 4 * tt, 4)}, v{vA1} offset:{256 + tt * 64}')
        for u in range(4):
            for gi in range(4):
                for h in range(2):
                    e(f'v_cndmask_b32 v{SPARSE + 8 * u + 2 * gi + h}, 0, v{WB + 2 * u + h}, s[{sM + 2 * gi}:{sM + 2 * gi + 1}]')
        self.phi(ACC, CSK, NMU, RSL, KP, P, E, T, None)
        for i in range(16):
            e(f'v_fmac_f32 v{ACV + i}, v{E + i}, v{CSV}')
        for i in range(16):
            e(f'v_mul_f32 v{ACV + i}, v{ACV + i}, v{RING + i}')
        for i in range(8):
            e(f'v_cvt_pk_bf16_f32 v{VP + i}, v{ACV + 2 * i}, v{ACV + 2 * i + 1}')
        self.softmax(RSL, P, E, T, lambda sg, i: PK + 8 * sg + i)
        e(f's_lshl_b32 s{sT0}, s{sW}, 12')
        e(f's_add_u32 s{sT0}, s{sT0}, {L_TS}')
        e(f'v_bfe_u32 v{vA1}, v{vL16}, 5, 2')
        e(f'v_lshlrev_b32 v{vA1}, 4, v{vA1}')
        e(f'v_lshl_add_u32 v{vA0}, v{vL16}, 2, v{vA1}')
        e(f'v_add_u32 v{vA0}, s{sT0}, v{vA0}')
        for q in range(4):
            if q:
                e(f'v_xor_b32 v{vA1}, {q << 4}, v{vA0}')
            e(f'ds_write_b128 v{vA1 if q else vA0}, {v(PK + 4 * q, 4)}')
        e(f'v_lshrrev_b32 v{vA0}, 6, v{vL16}')
        e(f'v_bfe_u32 v{vA1}, v{vL16}, 7, 2')
        e(f'v_bfe_u32 v{vA2}, v{vL16}, 5, 1')
        e(f'v_xor_b32 v{vA1}, v{vA1}, v{vA2}')
        e(f'v_lshlrev_b32 v{vA1}, 4, v{vA1}')
        e(f'v_lshl_add_u32 v{vA0}, v{vA0}, 6, v{vA1}')
        e(f'v_bfe_u32 v{vA2}, v{vL16}, 4, 1')
        e(f'v_lshl_add_u32 v{vA0}, v{vA2}, 3, v{vA0}')
        e(f'v_add_u32 v{vA0}, s{sT0}, v{vA0}')
        e(f'v_xor_b32 v{vA1}, 32, v{vA0}')
        AF = P
        for sg in range(2):
            for m in range(2):
                for hf in range(2):
                    e(f'ds_read_b64_tr_b16 {v(AF + 8 * sg + 4 * m + 2 * hf, 2)}, v{vA1 if sg else vA0} offset:{(32 * m + 16 * hf) * 64}')
        KV, Z = E, E + 8
        for m in range(2):
            for sg in range(2):
                A.add([mfma(v(KV + 4 * sg, 4), v(AF + 8 * sg + 4 * m, 4), v(VP + 4 * m, 4), '0' if m == 0 else None)])
        for m in range(2):
            for sg in range(2):
                A.add([mfma(v(Z + 4 * sg, 4), v(AF + 8 * sg + 4 * m, 4), one, '0' if m == 0 else None)])
        e(f's_lshl_b32 s{sT0}, s{sH}, 5')
        e(f's_add_u32 s{sT0}, s{sT0}, s{sRB}')
        e(f's_lshl_b32 s{sT0}, s{sT0}, 10')
        e(f's_add_u32 s{sT0}, s{sT0}, {WS["KVP"] + L_ * 1024 * KB}')
        e(f's_lshl_b32 s{sT1}, s{sH}, 12')
        e(f's_lshl_b32 s{sT2}, s{sRB}, 4')
        e(f's_add_u32 s{sT1}, s{sT1}, s{sT2}')
        e(f's_add_u32 s{sT1}, s{sT1}, {WS["ZP"] + L_ * 128 * KB}')
        e(f'v_lshlrev_b32 v{vA0}, 1, v{vL16}')
        for i in range(4):
            e(f'v_cvt_pk_bf16_f32 v{KP + i}, v{KV + 2 * i}, v{KV + 2 * i + 1}')
        st = [e(f'buffer_store_dwordx4 {v(KP, 4)}, v{vL16}, s[{SRD_WS}:{SRD_WS + 3}], s{sT0} offen sc1')]
        e('s_mov_b32 exec_lo, 0x00010001')
        e('s_mov_b32 exec_hi, 0x00010001')
        st.append(e(f'buffer_store_dwordx4 {v(Z, 4)}, v{vA0}, s[{SRD_WS}:{SRD_WS + 3}], s{sT1} offen sc1'))
        st.append(e(f'buffer_store_dwordx4 {v(Z + 4, 4)}, v{vA0}, s[{SRD_WS}:{SRD_WS + 3}], s{sT1} offen offset:2048 sc1'))
        e('s_mov_b64 exec, -1')
        self.stamp('kepi')
        steps = []
        for tt in range(4):
            for ks in range(16):
                c0 = '0' if ks == 0 else None
                fns = [lambda b, tt=tt, ks=ks, c0=c0: mfma(v(ACC + 4 * tt, 4), R4(XS2[ks]), b, c0)]
                if tt == 0:
                    fns.append(lambda b, ks=ks, c0=c0: mfma(v(CSQ, 4), R4(XS2[ks]), one, c0))
                steps.append((tt, ks, fns))
        body = self.lds_pass(xr, ACV, 9, 8, steps, None)
        A.add(body)
        self.signal_kv(st, L_)
        self.stamp('qpass+sig')
        A.add(self.load_w1(0, vA2))
        self.phi(ACC, CSQ, NMU, RSL, KP, P, E, T, None)
        RQ = 44
        self.softmax(RSL, P, E, T, lambda sg, i: RQ + 4 * (i >> 1) + 2 * sg + (i & 1))
        A.add(self.load_w1(1, vA2))
        for p in range(4):
            e(f'v_permlane32_swap_b32 v{RQ + p}, v{RQ + 8 + p}')
            e(f'v_permlane32_swap_b32 v{RQ + 4 + p}, v{RQ + 12 + p}')
        for p in range(4):
            e(f'v_permlane16_swap_b32 v{RQ + p}, v{RQ + 4 + p}')
            e(f'v_permlane16_swap_b32 v{RQ + 8 + p}, v{RQ + 12 + p}')
        SEL = 28
        e(f'v_bfe_u32 v{vA0}, v{vL16}, 6, 2')
        e(f'v_lshrrev_b32 v{vA1}, 8, v{vL16}')
        e(f'v_cmp_eq_u32 vcc, v{vA0}, v{vA1}')
        e(f'v_bfe_u32 v{vA0}, v{vL16}, 4, 1')
        e(f'v_lshlrev_b32 v{vA0}, 4, v{vA0}')
        e(f'v_mov_b32 v{vA1}, 0x3f80')
        e(f'v_lshlrev_b32 v{vA0}, v{vA0}, v{vA1}')
        e(f'v_cndmask_b32 v{vA0}, 0, v{vA0}, vcc')
        e(f'v_bfe_u32 v{vA1}, v{vL16}, 5, 1')
        e(f'v_cmp_eq_u32 vcc, 0, v{vA1}')
        for i in (0, 1, 4, 5):
            e(f'v_mov_b32 v{SEL + i}, 0')
        e(f'v_cndmask_b32 v{SEL + 2}, 0, v{vA0}, vcc')
        e(f'v_cndmask_b32 v{SEL + 3}, v{vA0}, 0, vcc')
        self.stamp('qepi')
        self.wait_kv(L_)
        self.stamp('kvwait')
        ZB = 60
        e(f's_lshl_b32 s{sT1}, s{sH}, 12')
        e(f's_add_u32 s{sT1}, s{sT1}, {WS["ZP"] + L_ * 128 * KB}')
        e(f'v_and_b32 v{vA0}, 0xf0, v{vL16}')
        e(f'v_lshrrev_b32 v{vA1}, 8, v{vL16}')
        e(f'v_lshl_add_u32 v{vA0}, v{vA1}, 9, v{vA0}')
        for sg in range(2):
            for q in range(2):
                of = sg * 2048 + q * 256
                e(f'buffer_load_dwordx4 {v(ZB + 8 * q + 4 * sg, 4)}, v{vA0}, s[{SRD_WS}:{SRD_WS + 3}], s{sT1} offen offset:{of} sc1')
        e(f's_lshl_b32 s{sT0}, s{sH}, 15')
        e(f's_add_u32 s{sT0}, s{sT0}, {WS["KVP"] + L_ * 1024 * KB}')
        e(f'v_add_u32 v{vA1}, s{sT0}, v{vL16}')
        bufs = [XB + 4 * i for i in range(16)] + [80 + 4 * i for i in range(16)]
        KVS = 36
        for p in range(32):
            A.add([self.ld(v(bufs[p], 4), vA1, p >> 2, (p & 3) * 1024, ' sc1')])
        for i in range(8):
            e(f'v_add_f32 v{ZB + i}, v{ZB + i}, v{ZB + 8 + i}')
        for rot in (8, 4, 2, 1):
            for i in range(8):
                e(f'v_add_f32_dpp v{ZB + i}, v{ZB + i}, v{ZB + i} row_ror:{rot} row_mask:0xf bank_mask:0xf')
        AZ, AKV = 68, 72
        for i in range(4):
            e(f'v_cvt_pk_bf16_f32 v{AZ + i}, v{ZB + 2 * i}, v{ZB + 2 * i + 1}')
        for p in range(32):
            A.add([mfma(v(KVS, 4), v(SEL + 2, 4), v(bufs[p], 4), '0' if p == 0 else None),
                   mfma(v(KVS + 4, 4), v(SEL, 4), v(bufs[p], 4), '0' if p == 0 else None)])
        NUM, DEN = 80, 96
        for tt in range(4):
            A.add([mfma(v(DEN + 4 * tt, 4), v(AZ, 4), v(RQ + 4 * tt, 4), '0')])
        for i in range(4):
            e(f'v_cvt_pk_bf16_f32 v{AKV + i}, v{KVS + 2 * i}, v{KVS + 2 * i + 1}')
        for tt in range(4):
            A.add([mfma(v(NUM + 4 * tt, 4), v(AKV, 4), v(RQ + 4 * tt, 4), '0')])
        for tt in range(4):
            e(f'v_add_f32 v{DEN + 4 * tt}, {f32(1e-6)}, v{DEN + 4 * tt}')
        for tt in range(4):
            e(f'v_rcp_f32 v{DEN + 4 * tt}, v{DEN + 4 * tt}')
        e(f's_lshl_b32 s{sT0}, s{sH}, 11')
        e(f's_add_u32 s{sT0}, s{sT0}, s{sRB64K}')
        e(f's_add_u32 s{sT0}, s{sT0}, {WS["OF"] + L_ * 2048 * KB}')
        for tt in range(4):
            for h in range(2):
                e(f'v_pk_mul_f32 {v(NUM + 4 * tt + 2 * h, 2)}, {v(NUM + 4 * tt + 2 * h, 2)}, {v(DEN + 4 * tt, 2)} op_sel_hi:[1,0]')
        OP = 112
        for i in range(8):
            e(f'v_cvt_pk_bf16_f32 v{OP + i}, v{NUM + 2 * i}, v{NUM + 2 * i + 1}')
        st = []
        for tp in range(2):
            e(f'v_permlane16_swap_b32 v{OP + 4 * tp}, v{OP + 4 * tp + 2}')
            e(f'v_permlane16_swap_b32 v{OP + 4 * tp + 1}, v{OP + 4 * tp + 3}')
        for tp in range(2):
            of = f' offset:{tp * 1024}' if tp else ''
            st.append(e(f'buffer_store_dwordx4 {v(OP + 4 * tp, 4)}, v{vL16}, s[{SRD_WS}:{SRD_WS + 3}], s{sT0} offen{of}{SC}'))
        self.stamp('o')
        if L_ == 0:
            st = st + self.wo_toks
        self.signal(st, 4 * L_ + 0)

    def unpack_res(self, ACC, BIAS=None):
        e = self.e
        for a in range(2):
            for r in range(4):
                e(f'v_lshlrev_b32 v{ACC + 8 * a + r}, 16, v{RES + 4 * a + r}')
                e(f'v_and_b32 v{ACC + 8 * a + 4 + r}, s{sMASKHI}, v{RES + 4 * a + r}')
        if BIAS is not None:
            for a in range(2):
                for r in range(4):
                    e(f'v_lshlrev_b32 v{vA0}, 16, v{BIAS + 4 * a + r}')
                    e(f'v_and_b32 v{vA1}, s{sMASKHI}, v{BIAS + 4 * a + r}')
                    e(f'v_add_f32 v{ACC + 8 * a + r}, v{ACC + 8 * a + r}, v{vA0}')
                    e(f'v_add_f32 v{ACC + 8 * a + 4 + r}, v{ACC + 8 * a + 4 + r}, v{vA1}')

    def rowmajor_off(self, va, vt):
        e = self.e
        e(f'v_bfe_u32 v{va}, v{vL16}, 4, 4')
        e(f'v_lshrrev_b32 v{vt}, 8, v{vL16}')
        e(f'v_lshlrev_b32 v{vt}, 4, v{vt}')
        e(f'v_lshl_add_u32 v{va}, v{va}, 10, v{vt}')
        e(f's_lshl_b32 s{sT0}, s{sW}, 14')
        e(f's_lshl_b32 s{sT1}, s{sJ}, 7')
        e(f's_add_u32 s{sT0}, s{sT0}, s{sT1}')
        e(f's_add_u32 s{sT0}, s{sT0}, s{sRB64K}')
        e(f'v_add_u32 v{va}, s{sT0}, v{va}')

    def finish_x(self, ACC, inst, T):
        e = self.e
        if inst < 0:
            self.rowmajor_off(vA0, vA1)
        else:
            e(f's_lshl_b32 s{sT0}, s{sW}, 14')
            e(f's_lshl_b32 s{sT1}, s{sJ}, 11')
            e(f's_add_u32 s{sT0}, s{sT0}, s{sT1}')
            e(f's_add_u32 s{sT0}, s{sT0}, s{sRB64K}')
            e(f's_add_u32 s{sT0}, s{sT0}, {WS["XF"] + inst * 2048 * KB}')
        st = []
        for a in range(2):
            for r in range(4):
                e(f'v_cvt_pk_bf16_f32 v{RES + 4 * a + r}, v{ACC + 8 * a + r}, v{ACC + 8 * a + 4 + r}')
            if inst < 0:
                of = f' offset:{a * 64}' if a else ''
                st.append(e(f'buffer_store_dwordx4 {v(RES + 4 * a, 4)}, v{vA0}, s[{SRD_OUT}:{SRD_OUT + 3}], 0 offen{of}'))
            else:
                of = f' offset:{a * 1024}' if a else ''
                st.append(e(f'buffer_store_dwordx4 {v(RES + 4 * a, 4)}, v{vL16}, s[{SRD_WS}:{SRD_WS + 3}], s{sT0} offen{of}{SC}'))
        if inst < 0:
            return st
        e(f'v_dot2_f32_bf16 v{T}, v{RES}, s{sONE}, 0')
        e(f'v_dot2_f32_bf16 v{T + 1}, v{RES}, v{RES}, 0')
        for i in range(1, 8):
            e(f'v_dot2_f32_bf16 v{T}, v{RES + i}, s{sONE}, v{T}')
            e(f'v_dot2_f32_bf16 v{T + 1}, v{RES + i}, v{RES + i}, v{T + 1}')
        e(f's_lshl_b32 s{sT0}, s{sRB}, 12')
        e(f's_lshl_b32 s{sT1}, s{sW}, 10')
        e(f's_add_u32 s{sT0}, s{sT0}, s{sT1}')
        e(f's_lshl_b32 s{sT1}, s{sJ}, 3')
        e(f's_add_u32 s{sT0}, s{sT0}, s{sT1}')
        e(f's_add_u32 s{sT0}, s{sT0}, {WS["ST"] + inst * 128 * KB}')
        e(f'v_permlane32_swap_b32 v{T}, v{T + 1}')
        e(f'v_and_b32 v{vA0}, 0xf0, v{vL16}')
        e(f'v_add_f32 v{T}, v{T}, v{T + 1}')
        e(f'v_lshrrev_b32 v{vA1}, 9, v{vL16}')
        e(f'v_mov_b32 v{T + 1}, v{T}')
        e(f'v_add_lshl_u32 v{vA0}, v{vA0}, v{vA1}, 2')
        e(f'v_permlane16_swap_b32 v{T}, v{T + 1}')
        e(f'v_add_f32 v{T}, v{T}, v{T + 1}')
        e('s_mov_b32 exec_lo, 0xffff')
        e('s_mov_b32 exec_hi, 0xffff')
        st.append(e(f'buffer_store_dword v{T}, v{vA0}, s[{SRD_WS}:{SRD_WS + 3}], s{sT0} offen{SC}'))
        e('s_mov_b64 exec, -1')
        return st

    def phase_wo(self, L_):
        A, e = self.A, self.e
        ACC, RING, NR, D = 28, 44, 12, 10
        self.unpack_res(ACC)
        e(f's_lshr_b32 s{sT0}, s{sW}, 1')
        e(f's_lshl_b32 s{sT0}, s{sT0}, 10')
        e(f's_and_b32 s{sT1}, s{sW}, 1')
        e(f's_lshl_b32 s{sT1}, s{sT1}, 8')
        e(f's_add_u32 s{sT0}, s{sT0}, s{sT1}')
        e(f's_add_u32 s{sT0}, s{sT0}, s{sRB64K}')
        e(f's_add_u32 s{sT0}, s{sT0}, {WS["OF"] + L_ * 2048 * KB}')
        e(f'v_add_u32 v{vA2}, s{sT0}, v{vGATH}')
        e(f'v_add_u32 v{vA3}, {L_WOW}, v{vL16}')

        def rd(i):
            return Ins(f'ds_read_b128 {v(RING + 4 * (i % NR), 4)}, v{vA3} offset:{i * 1024}')
        A.add([rd(i) for i in range(D)])
        self.wait_flags(4 * L_ + 0)
        self.stamp('owait')
        for ks in range(16):
            A.add([self.ld(v(XB + 4 * ks, 4), vA2, ks, 0, SC)])
        for i in range(64):
            ks, T = i >> 2, i & 3
            A.add([mfma(v(ACC + 4 * T, 4), v(RING + 4 * (i % NR), 4), v(XB + 4 * ks, 4))])
            if i + D < 64:
                A.add([rd(i + D)])
        self.stamp('wopass')
        st = self.finish_x(ACC, 2 * L_, 44)
        self.stamp('woepi')
        self.signal(st, 4 * L_ + 1)
        A.add(self.load_w1(2, vA2))

    def phase_up(self, L_):
        A, e = self.A, self.e
        ACC, RING, NR, D = 28, 76, 5, 4
        CS, B1, NMU, RS = 96, 108, 120, 124
        T = 128
        e(f's_lshr_b32 s{sT0}, s{sH}, 1')
        e(f's_lshl_b32 s{sT0}, s{sT0}, 6')
        e(f'v_lshrrev_b32 v{vA2}, 8, v{vL16}')
        e(f'v_lshl_add_u32 v{vA2}, v{vA2}, 4, s{sT0}')
        for t in range(3):
            of = f' offset:{t * 1024}' if t else ''
            e(f'buffer_load_dwordx4 {v(B1 + 4 * t, 4)}, v{vA2}, s[{SRD_B1}:{SRD_B1 + 3}], 0 offen{of}')
        one = v(ONES, 4)
        for t in range(2):
            for ks in range(16):
                A.add([mfma(v(CS + 4 * t, 4), R4(XS[t][ks]), one, '0' if ks == 0 else None)])
        self.wait_flags(4 * L_ + 1)
        self.stamp('x1wait')
        A.add(self.stats_load(2 * L_, T))
        it, toks = self.dma_x(2 * L_)
        A.add(it)
        for ks in range(16):
            A.add([mfma(v(CS + 8, 4), R4(XS[2][ks]), one, '0' if ks == 0 else None)])
        e(f's_and_b32 s{sT0}, s{sH}, 1')
        e(f's_xor_b32 s{sT0}, s{sT0}, 1')
        e(f's_lshl_b32 s{sT0}, s{sT0}, 4')
        for i in range(12):
            e(f'v_lshlrev_b32 v{B1 + i}, s{sT0}, v{B1 + i}')
            e(f'v_and_b32 v{B1 + i}, s{sMASKHI}, v{B1 + i}')
        self.stats_combine(T, True)
        steps = []
        for tt in range(4):
            for ks in range(16):
                c0 = '0' if ks == 0 else None
                steps.append((tt, ks, [lambda b, tt=tt, ks=ks, c0=c0, t=t: mfma(v(ACC + 16 * t + 4 * tt, 4), R4(XS[t][ks]), b, c0) for t in range(3)]))
        A.add(self.lds_pass(vL16, RING, NR, D, steps, toks))
        self.stamp('uppass')
        e(f'v_and_b32 v{vA0}, 0xf0, v{vL16}')
        e(f'v_add_u32 v{vA0}, {L_STAT}, v{vA0}')
        e(f'ds_read_b128 {v(NMU, 4)}, v{vA0}')
        e(f'ds_read_b128 {v(RS, 4)}, v{vA0} offset:256')
        if L_ == 0:
            A.add(self.load_wqkv(0, vA2))
            A.add(self.load_wqkv(1, vA2))
        e(f's_mul_i32 s{sT0}, s{sRB}, {86 * 2048}')
        e(f's_lshl_b32 s{sT1}, s{sH}, 11')
        e(f's_add_u32 s{sT0}, s{sT0}, s{sT1}')
        e(f's_add_u32 s{sT0}, s{sT0}, {WS["HF"] + L_ * 32 * 86 * 2048}')
        e(f'v_add_u32 v{vA0}, s{sT0}, v{vL16}')
        e(f's_cmp_lt_u32 s{sH}, 22')
        e(f's_cselect_b32 s{sT0}, s{sT0}, {OOB}')
        e(f'v_add_u32 v{vA1}, s{sT0}, v{vL16}')
        e(f's_mov_b32 s{sT2}, 65536')
        e(f's_mov_b32 s{sT3}, 131072')
        st = []
        for t in range(3):
            for tp in range(2):
                X = ACC + 16 * t + 8 * tp
                W_ = T
                for i in range(4):
                    tt, h = 2 * tp + (i >> 1), i & 1
                    sel = tt & 1
                    e(f'v_pk_fma_f32 {v(X + 2 * i, 2)}, {v(CS + 4 * t + 2 * h, 2)}, {v(NMU + (tt & 2), 2)}, {v(X + 2 * i, 2)} op_sel:[0,{sel},0] op_sel_hi:[1,{sel},1]')
                for i in range(4):
                    tt, h = 2 * tp + (i >> 1), i & 1
                    sel = tt & 1
                    e(f'v_pk_fma_f32 {v(X + 2 * i, 2)}, {v(X + 2 * i, 2)}, {v(RS + (tt & 2), 2)}, {v(B1 + 4 * t + 2 * h, 2)} op_sel:[0,{sel},0] op_sel_hi:[1,{sel},1]')
                for i in range(4):
                    e(f'v_pk_mul_f32 {v(W_ + 2 * i, 2)}, {v(X + 2 * i, 2)}, {v(X + 2 * i, 2)}')
                for i in range(4):
                    e(f'v_pk_fma_f32 {v(W_ + 2 * i, 2)}, {v(W_ + 2 * i, 2)}, s[{sC2}:{sC2 + 1}], s[{sC2}:{sC2 + 1}] op_sel:[0,0,1] op_sel_hi:[1,0,1]')
                for i in range(4):
                    e(f'v_pk_mul_f32 {v(W_ + 2 * i, 2)}, {v(W_ + 2 * i, 2)}, {v(X + 2 * i, 2)}')
                for i in range(8):
                    e(f'v_exp_f32 v{W_ + i}, v{W_ + i}')
                for i in range(4):
                    e(f'v_pk_add_f32 {v(W_ + 2 * i, 2)}, {v(W_ + 2 * i, 2)}, 1.0 op_sel_hi:[1,0]')
                for i in range(8):
                    e(f'v_rcp_f32 v{W_ + i}, v{W_ + i}')
                for i in range(4):
                    e(f'v_pk_mul_f32 {v(X + 2 * i, 2)}, {v(X + 2 * i, 2)}, {v(W_ + 2 * i, 2)}')
                O = T + 8 + 4 * (tp & 1)
                for i in range(4):
                    e(f'v_cvt_pk_bf16_f32 v{O + i}, v{X + 2 * i}, v{X + 2 * i + 1}')
                e(f'v_permlane16_swap_b32 v{O}, v{O + 2}')
                e(f'v_permlane16_swap_b32 v{O + 1}, v{O + 3}')
                so = ['0', f's{sT2}', f's{sT3}'][t]
                of = f' offset:{tp * 1024}' if tp else ''
                st.append(e(f'buffer_store_dwordx4 {v(O, 4)}, v{vA0 if t < 2 else vA1}, s[{SRD_WS}:{SRD_WS + 3}], {so} offen{of}{SC}'))
        self.stamp('gelu')
        self.signal(st, 4 * L_ + 2)

    def phase_dn(self, L_):
        A, e = self.A, self.e
        ACC = 28
        AD = 92
        B2 = 96
        bufs = [XB + 4 * i for i in range(16)] + [104 + 4 * i for i in range(10)]
        NB = len(bufs)
        e(f'v_lshrrev_b32 v{vA2}, 8, v{vL16}')
        e(f's_lshl_b32 s{sT0}, s{sJ}, 7')
        e(f'v_lshl_add_u32 v{vA2}, v{vA2}, 4, s{sT0}')
        e(f'buffer_load_dwordx4 {v(B2, 4)}, v{vA2}, s[{SRD_B2}:{SRD_B2 + 3}], 0 offen')
        e(f'buffer_load_dwordx4 {v(B2 + 4, 4)}, v{vA2}, s[{SRD_B2}:{SRD_B2 + 3}], 0 offen offset:64')
        e(f's_mul_i32 s{sT0}, s{sRB}, {86 * 2048}')
        e(f's_mul_i32 s{sT1}, s{sW}, {11 * 4096}')
        e(f's_add_u32 s{sT0}, s{sT0}, s{sT1}')
        e(f's_add_u32 s{sT0}, s{sT0}, {WS["HF"] + L_ * 32 * 86 * 2048}')
        for q in range(4):
            e(f's_xor_b32 s{sT1}, s{sW}, {q ^ 3}')
            e(f's_lshr_b32 s{sT2}, s{sT1}, 1')
            e(f's_lshl_b32 s{sT2}, s{sT2}, 10')
            e(f's_and_b32 s{sT1}, s{sT1}, 1')
            e(f's_lshl_b32 s{sT1}, s{sT1}, 8')
            e(f's_add_u32 s{sT1}, s{sT1}, s{sT2}')
            e(f's_add_u32 s{sT1}, s{sT1}, s{sT0}')
            e(f'v_add_u32 v{AD + q}, s{sT1}, v{vGATH}')
        self.unpack_res(ACC + 48, B2)
        self.wait_flags(4 * L_ + 2)
        self.stamp('hwait')
        seq = [(q, i) for q in range(4) for i in range(11)]

        def ld(n):
            q, i = seq[n]
            return self.ld(v(bufs[n % NB], 4), AD + q, i if i < 10 else f's{sLAST}', 0, SC)
        A.add([ld(n) for n in range(NB)])
        for n, (q, i) in enumerate(seq):
            for T in range(4):
                c0 = '0' if (i == 0 and q < 3) else None
                A.add([mfma(v(ACC + 16 * q + 4 * T, 4), a_(16 * i + 4 * T, 4), v(bufs[n % NB], 4), c0)])
            if n + NB < len(seq):
                A.add([ld(n + NB)])
        self.stamp('dnpass')
        for q in range(3):
            e(f's_xor_b32 s{sT1}, s{sW}, {q ^ 3}')
            e(f's_lshl_b32 s{sT1}, s{sT1}, 14')
            e(f'v_add_u32 v{AD + q}, s{sT1}, v{vL16}')
            for T in range(4):
                e(f'ds_write_b128 v{AD + q}, {v(ACC + 16 * q + 4 * T, 4)} offset:{L_ACT + q * 4096 + T * 1024}')
        e(f's_lshl_b32 s{sT1}, s{sW}, 14')
        e(f'v_add_u32 v{AD + 3}, s{sT1}, v{vL16}')
        A.wait_lg()
        e('s_barrier')
        for q in range(3):
            for T in range(4):
                e(f'ds_read_b128 {v(ACC + 16 * q + 4 * T, 4)}, v{AD + 3} offset:{L_ACT + q * 4096 + T * 1024}')
        for q in range(3):
            for i in range(8):
                e(f'v_pk_add_f32 {v(ACC + 48 + 2 * i, 2)}, {v(ACC + 48 + 2 * i, 2)}, {v(ACC + 16 * q + 2 * i, 2)}')
        self.stamp('dnred')
        if L_ == 0:
            st = self.finish_x(ACC + 48, 1, 96)
            self.stamp('dnepi')
            self.signal(st, 3)
            A.add(self.load_wqkv(2, vA2))
        else:
            self.finish_x(ACC + 48, -1, 96)
            self.stamp('dnepi')

    def gen(self):
        A, e = self.A, self.e
        e('s_cmp_ge_u32 s2, 256')
        e('s_cbranch_scc1 M_done')
        e(f's_load_dwordx2 s[{SRD_X}:{SRD_X + 1}], s[0:1], 0')
        e(f's_load_dwordx2 s[{SRD_WS}:{SRD_WS + 1}], s[0:1], 88')
        e(f's_load_dwordx2 s[{SRD_PHI}:{SRD_PHI + 1}], s[0:1], 16')
        e(f's_load_dwordx2 s[{SRD_B1}:{SRD_B1 + 1}], s[0:1], 48')
        e(f's_load_dwordx2 s[{SRD_B2}:{SRD_B2 + 1}], s[0:1], 64')
        e(f's_load_dwordx2 s[{SRD_OUT}:{SRD_OUT + 1}], s[0:1], 72')
        if PROFILE:
            e(f'v_mov_b32 v{vSTAMP}, 0')
        e('s_getpc_b64 s[76:77]')
        e(f'v_lshlrev_b32 v{vA0}, 7, v0')
        e(f'v_lshrrev_b32 v{vA1}, 6, v0')
        e(f'v_and_b32 v{vL16}, 63, v0')
        e(f'v_readfirstlane_b32 s{sW}, v{vA1}')
        e(f'v_lshlrev_b32 v{vL16}, 4, v{vL16}')
        e(f'global_load_dword v140, v{vA0}, s[76:77]')
        e(f'v_add_u32 v{vA0}, 32768, v{vA0}')
        e(f'v_min_u32 v{vA0}, M_done-main_kernel-64, v{vA0}')
        e(f'global_load_dword v141, v{vA0}, s[76:77]')
        e(f's_and_b32 s{sX}, s2, 7')
        e(f's_lshr_b32 s{sT0}, s2, 3')
        e(f's_and_b32 s{sJ}, s{sT0}, 7')
        e(f's_lshr_b32 s{sT0}, s{sT0}, 3')
        e(f's_lshl_b32 s{sRB}, s{sX}, 2')
        e(f's_add_u32 s{sRB}, s{sRB}, s{sT0}')
        e(f's_lshl_b32 s{sRB64K}, s{sRB}, 16')
        e(f's_lshl_b32 s{sH}, s{sJ}, 2')
        e(f's_add_u32 s{sH}, s{sH}, s{sW}')
        for k in range(1, 16):
            e(f's_mov_b32 s{sK0 + k}, {4096 * k}')
        for srd, n in ((SRD_WS, WS_USED), (SRD_X, 2048 * 1024), (SRD_OUT, 2048 * 1024), (SRD_PHI, 16384), (SRD_B1, 2752), (SRD_B2, 1024)):
            e(f's_mov_b32 s{srd + 2}, {n}')
            e(f's_mov_b32 s{srd + 3}, 0x20000')
        e(f's_mov_b32 s{sONE}, 0x3f803f80')
        e(f's_mov_b32 s{sMASKHI}, 0xffff0000')
        e(f's_cmp_lt_u32 s{sW}, 3')
        e(f's_cselect_b32 s{sLAST}, s{sK0 + 10}, s{sK0 + 9}')
        c1 = -2 * 0.7978845608028654 * 1.4426950408889634
        e(f's_mov_b32 s{sC2}, {f32(c1 * 0.044715)}')
        e(f's_mov_b32 s{sC2 + 1}, {f32(c1)}')
        for gi in range(4):
            m = 0x000f000f << (4 * gi)
            e(f's_mov_b32 s{sM + 2 * gi}, 0x{m:08x}')
            e(f's_mov_b32 s{sM + 2 * gi + 1}, 0x{m:08x}')
        e('s_waitcnt lgkmcnt(0)')
        self.rstamp(62)
        self.stamp('start')
        it, self.x0_toks = self.dma_x(-1)
        A.add(it)
        e(f'v_lshrrev_b32 v{vA0}, 8, v{vL16}')
        e(f'v_and_b32 v{vA1}, 1, v{vA0}')
        e(f'v_lshrrev_b32 v{vA2}, 1, v{vA0}')
        e(f'v_and_b32 v{vGATH}, 0xf0, v{vL16}')
        e(f'v_lshl_add_u32 v{vGATH}, v{vA1}, 9, v{vGATH}')
        e(f'v_lshl_add_u32 v{vGATH}, v{vA2}, 11, v{vGATH}')
        e(f'v_lshl_add_u32 v{vA1}, v{vA1}, 3, v{vA2}')
        e(f'v_bfe_u32 v{vA2}, v{vL16}, 4, 2')
        e(f'v_lshlrev_b32 v{vA2}, 1, v{vA2}')
        e(f'v_lshl_add_u32 v{vA1}, v{vA1}, 5, v{vA2}')
        e(f's_lshl_b32 s{sT0}, s{sH}, 9')
        for hi in range(2):
            for u in range(4):
                for h in range(2):
                    e(f'buffer_load_ushort v{104 + 8 * hi + 2 * u + h}, v{vA1}, s[{SRD_PHI}:{SRD_PHI + 3}], s{sT0} offen offset:{(2 * h + hi) * 64 + u * 8}')
        lk, lv = self.load_wqkv(0, 142), self.load_wqkv(1, 143)
        A.add(lk[:3] + lv[:3])
        for ks in range(16):
            A.add([lk[3 + ks], lv[3 + ks]])
        e(f'v_bfe_u32 v{vA1}, v{vL16}, 6, 2')
        e(f'v_lshrrev_b32 v{vA2}, 1, v{vA1}')
        e(f'v_xor_b32 v{vA1}, v{vA1}, v{vA2}')
        e(f'v_and_b32 v{vA1}, 1, v{vA1}')
        e(f'v_lshl_or_b32 v{vA1}, v{vA1}, 1, v{vA2}')
        e(f'v_xor_b32 v{vA1}, v{vA1}, v{vA0}')
        e(f'v_lshlrev_b32 v{vA1}, 4, v{vA1}')
        e(f'v_and_b32 v{vA2}, 0xf0, v{vL16}')
        e(f'v_lshl_add_u32 v{vXR}, v{vA2}, 2, v{vA1}')
        for i in range(4):
            e(f'v_mov_b32 v{ONES + i}, s{sONE}')
        self.rowmajor_off(vA0, vA1)
        e(f'buffer_load_dwordx4 {v(RES, 4)}, v{vA0}, s[{SRD_X}:{SRD_X + 3}], 0 offen')
        e(f'buffer_load_dwordx4 {v(RES + 4, 4)}, v{vA0}, s[{SRD_X}:{SRD_X + 3}], 0 offen offset:64')
        A.add(self.load_wqkv(2, vA2))
        it, self.wo_toks = self.load_wo_lds(vA1)
        A.add(it)
        A.add(self.load_w2(vA2, vA1))
        self.stamp('issued')
        for L_ in range(2):
            self.phase_qkv(L_)
            self.phase_wo(L_)
            self.phase_up(L_)
            self.phase_dn(L_)
        if PROFILE:
            e('s_waitcnt vmcnt(0)')
            self.stamp('end')
            self.rstamp(63)
            e(f's_lshl_b32 s{sT0}, s2, 2')
            e(f's_add_u32 s{sT0}, s{sT0}, s{sW}')
            e(f's_lshl_b32 s{sT0}, s{sT0}, 8')
            e(f's_add_u32 s{sT0}, s{sT0}, {WS["PROF"]}')
            e(f'v_lshrrev_b32 v{vA0}, 2, v{vL16}')
            e(f'buffer_store_dword v{vSTAMP}, v{vA0}, s[{SRD_WS}:{SRD_WS + 3}], s{sT0} offen')
        e('M_done:')
        e('s_endpgm')
        return A


def kd(name, vgpr, acc, sgpr):
    return f'''.amdhsa_kernel {name}
  .amdhsa_next_free_vgpr {vgpr}
  .amdhsa_next_free_sgpr {sgpr}
  .amdhsa_accum_offset {acc}
  .amdhsa_group_segment_fixed_size 0
  .amdhsa_kernarg_size 96
  .amdhsa_user_sgpr_count 2
  .amdhsa_user_sgpr_kernarg_segment_ptr 1
  .amdhsa_system_sgpr_workgroup_id_x 1
.end_amdhsa_kernel
'''


def main():
    prep, st1 = gen_prep().finalize()
    M = Main()
    body, st2 = M.gen().finalize()
    txt = ['; hedgehog linear attention + channel MLP, two interleaved layer pairs (generated by tools/gen1.py)',
           '; @launch kernel=prep_kernel grid=(600,1,1) block=(256,1,1) lds=0',
           f'; @launch kernel=main_kernel grid=(256,1,1) block=(256,1,1) lds={LDS_BYTES}',
           '.amdgcn_target "amdgcn-amd-amdhsa--gfx950"', '.text']
    for name, code in (('prep_kernel', prep), ('main_kernel', body)):
        txt += [f'.globl {name}', '.p2align 8', f'.type {name},@function', f'{name}:']
        txt += [('' if l.endswith(':') else '    ') + l for l in code]
    txt += ['.section .rodata,"a"', '.p2align 6', kd('prep_kernel', 32, 32, 40), '.p2align 6', kd('main_kernel', 512, 256, 96)]
    open(OUTFILE, 'w').write('\n'.join(txt) + '\n')
    import json
    json.dump({'WS': WS, 'stamps': M.names}, open(OUTFILE + '.json', 'w'))
    print('prep', st1, 'main', st2, 'ws', WS_USED)


main()
```

```python
import re

REG_RE = re.compile(r'^(-?)(?:abs\()?([vas])(?:\[(\d+):(\d+)\]|(\d+))\)?$')

TRANS = ('v_exp_f32', 'v_log_f32', 'v_rcp_f32', 'v_rsq_f32', 'v_sqrt_f32', 'v_sin_f32', 'v_cos_f32')


def regs_of(tok):
    tok = tok.strip()
    if tok in ('vcc', 'exec', 'm0', 'scc'):
        return [tok]
    if tok in ('vcc_lo', 'vcc_hi'):
        return ['vcc']
    if tok in ('exec_lo', 'exec_hi'):
        return ['exec']
    m = REG_RE.match(tok)
    if not m:
        return []
    k = m.group(2)
    if m.group(3) is not None:
        return [f'{k}{i}' for i in range(int(m.group(3)), int(m.group(4)) + 1)]
    return [f'{k}{m.group(5)}']


class Ins:
    __slots__ = ('text', 'op', 'kind', 'dst', 'src', 'srcc', 'raw', 'target', 'passes', 'wide', 'dpp', 'data', 'note')

    def __init__(self, text, raw=False):
        self.text = text
        self.raw = raw
        self.target = None
        self.passes = 0
        self.wide = False
        self.dpp = False
        self.srcc = []
        self.data = []
        self.note = None
        self.parse()

    def parse(self):
        t = self.text.split(';')[0].strip()
        self.dst, self.src = [], []
        if not t or t.endswith(':') or t.startswith('.'):
            self.op, self.kind = t, 'dir'
            return
        parts = t.split(None, 1)
        op = parts[0]
        self.op = op
        rest = parts[1] if len(parts) > 1 else ''
        ops, cur, depth = [], '', 0
        for ch in rest:
            if ch in '[(':
                depth += 1
            if ch in '])':
                depth -= 1
            if ch == ',' and depth == 0:
                ops.append(cur.strip())
                cur = ''
            else:
                cur += ch
        if cur.strip():
            ops.append(cur.strip())
        mods = ''
        if ops:
            last = ops[-1].split(None, 1)
            ops[-1] = last[0]
            mods = last[1] if len(last) > 1 else ''
        R = [regs_of(o) for o in ops]
        flat = lambda L: [r for x in L for r in x]
        if op.startswith('v_mfma'):
            self.kind = 'mfma'
            self.dst = R[0]
            self.src = R[1] + R[2]
            self.srcc = R[3]
            self.passes = 8 if '32x32x16' in op or '32x32x8' in op else 4
        elif op.startswith('v_'):
            self.kind = 'valu'
            base = op.replace('_e32', '').replace('_e64', '').replace('_dpp', '')
            self.dpp = op.endswith('_dpp') or 'quad_perm' in mods or 'row_' in mods
            if base == 'v_nop':
                pass
            elif base.startswith('v_permlane') and 'swap' in base:
                self.dst = R[0] + R[1]
                self.src = R[0] + R[1]
            elif base.startswith('v_cmp'):
                self.dst = R[0]
                self.src = flat(R[1:])
            elif base in ('v_add_co_u32', 'v_sub_co_u32', 'v_addc_co_u32', 'v_subb_co_u32'):
                self.dst = R[0] + R[1]
                self.src = flat(R[2:])
            else:
                self.dst = R[0]
                self.src = flat(R[1:])
                if base in ('v_fmac_f32', 'v_dot2c_f32_bf16', 'v_writelane_b32') or self.dpp:
                    self.src = self.src + R[0]
            if base == 'v_nop':
                self.dst, self.src = [], []
        elif op.startswith('buffer_') or op.startswith('global_'):
            self.kind = 'vmem'
            lds = bool(re.search(r'\blds\b', mods)) or 'load_lds' in op
            if 'load' in op and not lds:
                self.dst = R[0]
                self.src = flat(R[1:])
                if 'd16' in op:
                    self.src = self.src + R[0]
            elif 'load' in op and lds:
                self.src = flat(R) + ['m0']
            elif op.startswith('buffer_store') or op.startswith('buffer_atomic'):
                self.src = flat(R)
                self.data = R[0]
                self.wide = op.endswith('x4') or op.endswith('x3')
                if op.startswith('buffer_atomic') and re.search(r'\bsc0\b', mods):
                    self.dst = R[0]
            elif op.startswith('global_store'):
                self.src = flat(R)
                self.data = R[1]
                self.wide = op.endswith('x4') or op.endswith('x3')
            else:
                self.src = flat(R)
        elif op.startswith('ds_'):
            self.kind = 'ds'
            if op.startswith('ds_read') or op.startswith('ds_bpermute') or op.startswith('ds_swizzle'):
                self.dst = R[0]
                self.src = flat(R[1:])
            else:
                self.src = flat(R)
        elif op.startswith('s_'):
            self.kind = 'salu'
            if op in ('s_waitcnt', 's_nop', 's_barrier', 's_endpgm', 's_sleep', 's_setprio') or op.startswith('s_cbranch') or op == 's_branch':
                self.kind = 'ctl'
                if op.startswith('s_cbranch_vcc'):
                    self.src = ['vcc']
            elif op.startswith('s_load') or op in ('s_memtime', 's_memrealtime'):
                self.kind = 'smem'
                self.dst = R[0]
                self.src = flat(R[1:])
            elif op.startswith('s_cmp') or op.startswith('s_bitcmp'):
                self.src = flat(R)
                self.dst = ['scc']
            else:
                self.dst = R[0]
                self.src = flat(R[1:])
        else:
            raise ValueError('cannot parse: ' + self.text)


class WaitVM:
    def __init__(self, targets):
        self.targets = targets


class WaitLG:
    def __init__(self, targets=None):
        self.targets = targets


class Asm:
    def __init__(self):
        self.items = []

    def e(self, text, raw=False):
        i = Ins(text, raw)
        self.items.append(i)
        return i

    def raw(self, text):
        for line in text.strip('\n').split('\n'):
            self.items.append(Ins(line.strip(), True))

    def add(self, items):
        self.items.extend(items)

    def wait_vm(self, targets):
        if not isinstance(targets, (list, tuple)):
            targets = [targets]
        self.items.append(WaitVM(list(targets)))

    def wait_lg(self, targets=None):
        if targets is not None and not isinstance(targets, (list, tuple)):
            targets = [targets]
        self.items.append(WaitLG(targets))

    def comment(self, s):
        self.items.append(Ins('; ' + s))

    def finalize(self):
        out = []
        vmq, lgq = [], []
        hist = []
        stats = {'nops': 0, 'waits': 0, 'n': 0}

        def emit_wait(vm=None, lg=None):
            s = 's_waitcnt'
            if vm is not None:
                s += f' vmcnt({min(vm, 60)})'
            if lg is not None:
                s += f' lgkmcnt({min(lg, 14)})'
            w = Ins(s)
            out.append(s)
            hist.append((w, 1))
            stats['waits'] += 1

        def retire(q, n):
            if n < len(q):
                del q[:len(q) - n]

        def need_states(ins):
            need = 0
            dist = 0
            rd = set(ins.src) | set(ins.srcc)
            wr = set(ins.dst)
            base = ins.op.replace('_e32', '').replace('_e64', '').replace('_dpp', '')
            for p, st in reversed(hist):
                if dist >= 20:
                    break
                req = 0
                pd = set(p.dst)
                pbase = p.op.replace('_e32', '').replace('_e64', '').replace('_dpp', '')
                if p.kind == 'valu':
                    vd = {r for r in pd if r[0] in 'va' and r != 'vcc'}
                    sd = pd - vd
                    isdot = pbase.startswith('v_dot')
                    if ins.kind == 'mfma' and vd & rd:
                        req = max(req, 3 if isdot else 2)
                    if ins.kind == 'valu':
                        if pbase in TRANS and base not in TRANS and vd & rd:
                            req = max(req, 1)
                        if pbase in TRANS and base in TRANS and vd & rd:
                            req = max(req, 1)
                        if base.startswith('v_permlane') and vd & rd:
                            req = max(req, 2)
                        if ins.dpp and vd & rd:
                            req = max(req, 2)
                        if base in ('v_readlane_b32', 'v_readfirstlane_b32') and vd & rd:
                            req = max(req, 1)
                        if sd & rd:
                            req = max(req, 4 if base in ('v_readlane_b32', 'v_writelane_b32') else 2)
                        if isdot and vd & (rd | wr):
                            same_c = (base == pbase) and not (vd & set(ins.src[:-len(ins.dst)] if ins.dst else ins.src))
                            if not same_c:
                                req = max(req, 3)
                    if isdot and ins.kind in ('vmem', 'ds') and vd & (rd | wr):
                        req = max(req, 3)
                    if ins.kind == 'vmem' and sd & rd:
                        req = max(req, 5)
                    if ins.kind in ('salu', 'ctl', 'smem') and sd & rd:
                        req = max(req, 4)
                elif p.kind == 'mfma':
                    big = {4: 8, 8: 12}[p.passes]
                    if ins.kind == 'mfma':
                        if pd & set(ins.src):
                            req = max(req, big)
                        if pd & set(ins.srcc):
                            if ins.srcc == p.dst and ins.passes == p.passes:
                                pass
                            else:
                                req = max(req, big - 2)
                        elif pd & wr:
                            req = max(req, big)
                    elif ins.kind in ('valu', 'vmem', 'ds'):
                        if pd & (rd | wr):
                            req = max(req, big)
                        if ins.kind == 'valu' and set(p.srcc) & wr:
                            req = max(req, {4: 3, 8: 7}[p.passes])
                elif p.kind == 'vmem':
                    if p.wide and set(p.data) & wr:
                        req = max(req, 2)
                elif p.kind == 'salu':
                    if 'm0' in pd and 'm0' in rd and ins.kind == 'vmem':
                        req = max(req, 1)
                need = max(need, req - dist)
                dist += st
            return need

        issued = set()
        for it in self.items:
            if isinstance(it, (WaitVM, WaitLG)) and it.targets:
                for t in it.targets:
                    if id(t) not in issued:
                        raise RuntimeError('wait on an instruction that was not issued yet: ' + t.text)
            if isinstance(it, Ins):
                if id(it) in issued:
                    raise RuntimeError('instruction object emitted twice: ' + it.text)
                issued.add(id(it))
            if isinstance(it, WaitVM):
                idx = [vmq.index(t) for t in it.targets if t in vmq]
                if idx:
                    n = len(vmq) - 1 - max(idx)
                    emit_wait(vm=n)
                    retire(vmq, min(n, 60))
                continue
            if isinstance(it, WaitLG):
                if it.targets is None:
                    if lgq:
                        emit_wait(lg=0)
                        lgq.clear()
                else:
                    idx = [lgq.index(t) for t in it.targets if t in lgq]
                    if idx:
                        n = len(lgq) - 1 - max(idx)
                        if any(x.kind == 'smem' for x in lgq):
                            n = 0
                        emit_wait(lg=n)
                        retire(lgq, min(n, 14))
                continue
            ins = it
            if ins.kind == 'dir':
                out.append(ins.text)
                continue
            if ins.raw:
                touch = set(ins.src) | set(ins.dst) | set(ins.srcc)
                for q in (vmq, lgq):
                    for p in q:
                        if set(p.dst) & touch:
                            raise RuntimeError(f'raw instr touches in-flight load dst: {ins.text} vs {p.text}')
                n = need_states(ins)
                if n > 0:
                    out.append(f's_nop {n - 1}')
                out.append(ins.text)
                hist.append((ins, 0))
                stats['n'] += 1
                continue
            touch = set(ins.src) | set(ins.dst) | set(ins.srcc)
            vm = lg = None
            for i, p in enumerate(vmq):
                if set(p.dst) & touch:
                    if ins.kind == 'vmem' and not (set(p.dst) & set(ins.src)):
                        continue
                    vm = len(vmq) - 1 - i
            for i, p in enumerate(lgq):
                if set(p.dst) & touch:
                    if ins.kind == 'ds' and p.kind == 'ds' and not (set(p.dst) & set(ins.src)):
                        continue
                    lg = len(lgq) - 1 - i
            if lg is not None and any(x.kind == 'smem' for x in lgq):
                lg = 0
            if vm is not None or lg is not None:
                emit_wait(vm, lg)
                if vm is not None:
                    retire(vmq, min(vm, 60))
                if lg is not None:
                    retire(lgq, min(lg, 14))
            if ins.op == 's_waitcnt':
                m = re.search(r'vmcnt\((\d+)\)', ins.text)
                if m:
                    retire(vmq, int(m.group(1)))
                m = re.search(r'lgkmcnt\((\d+)\)', ins.text)
                if m:
                    n = int(m.group(1))
                    if n == 0 or not any(x.kind == 'smem' for x in lgq):
                        retire(lgq, n)
            n = need_states(ins)
            if n > 0:
                out.append(f's_nop {n - 1}')
                hist.append((Ins(f's_nop {n - 1}'), n))
                stats['nops'] += 1
            out.append(ins.text)
            stats['n'] += 1
            st = 1
            if ins.op == 's_nop':
                st = int(ins.text.split()[1], 0) + 1
            hist.append((ins, st))
            if len(hist) > 64:
                del hist[:32]
            if ins.kind == 'vmem':
                vmq.append(ins)
            elif ins.kind in ('ds', 'smem'):
                lgq.append(ins)
        return out, stats


def interleave(main, fill, start=0, end=None, per=None):
    pos = [i for i, x in enumerate(main) if isinstance(x, Ins) and x.kind == 'mfma']
    if end is None:
        end = len(pos)
    slots = pos[start:end]
    if not fill:
        return list(main)
    out = []
    n = len(slots)
    k = 0
    slotset = {p: i for i, p in enumerate(slots)}
    for i, x in enumerate(main):
        out.append(x)
        if i in slotset:
            j = slotset[i]
            if per is None:
                tgt = (len(fill) * (j + 1) + n - 1) // n
            else:
                tgt = min(len(fill), per * (j + 1))
            while k < tgt:
                out.append(fill[k])
                k += 1
    out.extend(fill[k:])
    return out


def cost(it):
    if not isinstance(it, Ins):
        return 4
    if it.kind == 'dir':
        return 0
    base = it.op.replace('_e32', '').replace('_e64', '').replace('_dpp', '')
    if base in TRANS or base.startswith('v_permlane'):
        return 8
    if it.kind == 'mfma':
        return 16
    if it.kind == 'vmem':
        return 24 if it.wide else 12
    if it.op == 'ds_write_b128':
        return 24
    return 4


def is_valu(it):
    return isinstance(it, Ins) and it.kind in ('valu', 'mfma')


def sched(mf, pins, fills, budget=8):
    out = list(pins.get(-1, []))
    pos = [0] * len(fills)
    for i, m in enumerate(mf):
        out.append(m)
        b = budget
        free_nv = True
        for it in pins.get(i, []):
            out.append(it)
            if free_nv and not is_valu(it):
                free_nv = False
                b -= cost(it) - 4
            else:
                b -= cost(it)
                free_nv = False
        if free_nv:
            for k, st in enumerate(fills):
                if pos[k] < len(st) and st[pos[k]][0] <= i and not is_valu(st[pos[k]][1]):
                    out.append(st[pos[k]][1])
                    b -= cost(st[pos[k]][1]) - 4
                    pos[k] += 1
                    break
        progress = True
        while progress and b > 0:
            progress = False
            for k, st in enumerate(fills):
                if pos[k] < len(st) and st[pos[k]][0] <= i and min(cost(st[pos[k]][1]), budget) <= b:
                    out.append(st[pos[k]][1])
                    b -= cost(st[pos[k]][1])
                    pos[k] += 1
                    progress = True
                    break
    left = []
    for k, st in enumerate(fills):
        left.append([x[1] for x in st[pos[k]:]])
    return out, left


def spread(main, extra, start=0.0, end=1.0):
    groups, cur = [], []
    for it in extra:
        cur.append(it)
        if isinstance(it, Ins) and it.kind == 'vmem':
            groups.append(cur)
            cur = []
    if cur:
        if groups:
            groups[-1].extend(cur)
        else:
            groups.append(cur)
    tot = sum(cost(x) for x in main)
    out, acc, k = [], 0, 0
    n = len(groups)
    for it in main:
        while k < n and acc >= tot * (start + (end - start) * k / max(n, 1)):
            out.extend(groups[k])
            k += 1
        out.append(it)
        acc += cost(it)
    while k < n:
        out.extend(groups[k])
        k += 1
    return out
```

```python
import sys, struct, json
sys.path.insert(0, 'tools')
from asmfw import Asm, Ins, WaitVM, WaitLG, sched, spread, cost

NAME = 'interleave_layers__linear_kernel_hedgehog__mixer_channel_mlp__prompt'
KNAME = NAME + '_kernel'
PROFILE = '--profile' in sys.argv
OPT = {}
for a in sys.argv[1:]:
    if a.startswith('--') and '=' in a:
        k, val = a[2:].split('=')
        OPT[k] = val
OUTFILE = [a for a in sys.argv[1:] if not a.startswith('--')]
OUTFILE = OUTFILE[0] if OUTFILE else f'cdna_kernels/{NAME}.s'
FORCE_SLOW = int(OPT.get('slow', 0))
NT = ' nt' if int(OPT.get('nt', 0)) else ''
LATEST = int(OPT.get('latest', 1))
SC0 = lambda first: ' sc1' if first else ''
PAD = int(OPT.get('pad', 0))


def f32(x):
    return '0x%08x' % struct.unpack('<I', struct.pack('<f', x))[0]


KB = 1024
WS = {}
_off = 0
def alloc(name, size):
    global _off
    WS[name] = _off
    _off += (size + 4095) // 4096 * 4096
alloc('EPOCH', 4096)
alloc('PFLAG', 65536)
alloc('FLAG', 32 * 128)
alloc('WQKV', 32 * 3 * 16 * KB)
alloc('W1', 88 * 16 * KB)
alloc('WO', 8 * 16 * 4 * KB)
alloc('W2', 8 * 43 * 4 * KB)
alloc('XF', 3 * 32 * 64 * KB)
alloc('ST', 3 * 32 * 4 * KB)
alloc('OF', 2 * 32 * 86 * 2 * KB)
alloc('HF', 2 * 32 * 86 * 2 * KB)
alloc('KVP', 2 * 32 * 32 * KB)
alloc('ZP', 2 * 32 * 2 * KB)
alloc('KVF', 2 * 8 * 32 * KB)
alloc('PROF', 1024 * 256)
WS_USED = _off
OOB = 0x70000000
NORE = int(OPT.get('nore', 0))
RBH = 86 * 2048
XFo = lambda inst: WS['XF'] + NORE * inst * 2048 * KB
STo = lambda inst: WS['ST'] + NORE * inst * 128 * KB
HFo = lambda L: WS['HF'] + NORE * L * 32 * RBH
OFo = lambda L: (WS['OF'] + L * 32 * RBH) if NORE else WS['HF']
TIMEOUT = 0x80000

L_ACT, L_WOW, L_TS, L_STAT = 0, 64 * KB, 128 * KB, 144 * KB
L_CS = 145 * KB
LDS_BYTES = 148 * KB


def v(i, n=1):
    return f'v{i}' if n == 1 else f'v[{i}:{i + n - 1}]'
def a_(i, n=1):
    return f'a{i}' if n == 1 else f'a[{i}:{i + n - 1}]'


SRD_WS, SRD_X, SRD_OUT, SRD_PHI, SRD_B1, SRD_B2, SRD_WQ, SRD_P = 4, 8, 12, 16, 20, 24, 76, 80
def srd(n):
    return f's[{n}:{n + 3}]'
WSR = srd(SRD_WS)
sW, sJ, sRB, sH, sX, sGW = 28, 29, 30, 31, 32, 33
sT0, sT1, sT2, sT3 = 34, 35, 36, 37
sCNT, sLAST, sONE, sMASKHI, sTM, sRB64K, sNONCE, sFAST, sW1K = 38, 39, 40, 41, 42, 44, 45, 46, 47
sK0 = 47
sW16K = 63
sM, sJM, sC2 = 64, 72, 74
pWO, pW1, pW2, sPC = 48, 50, 52, 54
sB_WQ, sB_W1, sB_W2, sB_W2x, sB_WO = 92, 93, 96, 97, 98
sS0, sS1, sS2 = 99, 100, 101
sS3, sS4 = 84, 85
sXCC = 3
sROT4, sPC_ = 0, 1
sPD = 87
sRBH = 86
sRQ, sRW = 64, 88

vL16, vGATH, vFLG, vSTAMP = 1, 2, 3, 4
vA0, vA1, vPF, vA3 = 5, 6, 7, 0
RES, WB, ONES = 8, 16, 24
XS0 = [('a', 176 + 4 * k) for k in range(16)]
XS1 = [('v', 144 + 4 * k) for k in range(12)] + [('a', 240 + 4 * k) for k in range(4)]
XS2 = [('v', 192 + 4 * k) for k in range(16)]
XS = [XS0, XS1, XS2]
SPARSE = 144
ONE4 = v(ONES, 4)


def R4(t):
    return f'{t[0]}[{t[1]}:{t[1] + 3}]'
def R2(t, h):
    return f'{t[0]}[{t[1] + 2 * h}:{t[1] + 2 * h + 1}]'
def K(k):
    return '0' if k == 0 else f's{sK0 + k}'
def mfma(d, a, b, c=None):
    c = d if c is None else c
    return Ins(f'v_mfma_f32_16x16x32_bf16 {d}, {a}, {b}, {c}')
def I(txt):
    return [Ins(l.strip()) for l in txt.strip().split('\n') if l.strip()]
def off(n):
    return f' offset:{n}' if n else ''
def at(idx, items):
    return [(idx, x) for x in items]


class PF:
    def __init__(self):
        self.q = []
    def push(self, items):
        self.q.extend(items)
    def take(self, n):
        out = []
        while self.q and n > 0:
            it = self.q.pop(0)
            out.append(it)
            if it.kind == 'vmem':
                n -= 1
        return out
    def rest(self):
        return self.take(10 ** 6)


def paced(items, first, step):
    out, idx = [], first
    for it in items:
        out.append((int(idx), it))
        if it.kind == 'vmem':
            idx += step
    return out


class Main:
    def __init__(self):
        self.A = Asm()
        self.nstamp = 0
        self.lbl = 0
        self.names = []
        self.pf = PF()

    def e(self, t):
        return self.A.e(t)

    def stamp(self, name):
        if not PROFILE:
            return
        self.names.append(name)
        self.e(f's_memtime s[{sTM}:{sTM + 1}]')
        self.e('s_waitcnt lgkmcnt(0)')
        self.e(f'v_writelane_b32 v{vSTAMP}, s{sTM}, {self.nstamp}')
        self.nstamp += 1

    def rstamp(self, idx):
        if not PROFILE:
            return
        self.e(f's_memrealtime s[{sTM}:{sTM + 1}]')
        self.e('s_waitcnt lgkmcnt(0)')
        self.e(f'v_writelane_b32 v{vSTAMP}, s{sTM}, {idx}')

    def label(self):
        self.lbl += 1
        return f'L{self.lbl}'

    def signal(self, stores, seam):
        A = self.A
        L, Ls = self.label(), self.label()
        self.e(f'v_add_u32 v{vA1}, s{sNONCE}, {seam}')
        self.e(f's_cmp_lg_u32 s{sW}, 0')
        A.wait_vm(stores)
        A.wait_lg()
        self.e('s_barrier')
        self.e(f's_cbranch_scc1 {L}')
        A.raw(f'''
        s_cmp_eq_u32 s{sFAST}, 0
        s_mov_b64 exec, s[{sJM}:{sJM + 1}]
        s_cbranch_scc1 {Ls}
        buffer_store_dword v{vA1}, v{vFLG}, {WSR}, 0 offen
        s_mov_b64 exec, -1
        s_branch {L}
        {Ls}:
        buffer_wbl2 sc1
        s_waitcnt vmcnt(0)
        buffer_store_dword v{vA1}, v{vFLG}, {WSR}, 0 offen sc1
        s_mov_b64 exec, -1
        {L}:
        ''')

    def wait_flags(self, seam):
        A = self.A
        L, Lp = self.label(), self.label()
        self.e(f's_cmp_lg_u32 s{sW}, 0')
        self.e(f's_cbranch_scc1 {L}')
        A.raw(f'''
        s_mov_b64 exec, 0xff
        s_mov_b32 s{sCNT}, 0
        s_add_u32 s{sT0}, s{sNONCE}, {seam}
        {Lp}:
        buffer_load_dword v{vA1}, v{vFLG}, {WSR}, 0 offen sc1
        s_add_u32 s{sCNT}, s{sCNT}, 1
        s_cmp_gt_u32 s{sCNT}, {TIMEOUT}
        s_cbranch_scc1 {L}x
        s_waitcnt vmcnt(0)
        v_subrev_u32 v{vA1}, s{sT0}, v{vA1}
        v_cmp_lt_u32 vcc, {7 - seam}, v{vA1}
        s_cbranch_vccnz {Lp}
        {L}x:
        s_mov_b64 exec, -1
        s_cmp_lg_u32 s{sFAST}, 0
        s_cbranch_scc1 {L}
        buffer_inv sc1
        s_waitcnt vmcnt(0)
        {L}:
        ''')
        self.e('s_barrier')

    def retry(self, loads, check):
        A = self.A
        Lc, Lo = self.label(), self.label()
        A.wait_vm(loads)
        self.e(f's_mov_b32 s{sCNT}, 0')
        self.e(f'{Lc}:')
        for t in check:
            self.e(t)
        self.e(f's_cbranch_vccz {Lo}')
        A.raw('\n'.join(l.text for l in loads))
        A.raw(f'''
        s_add_u32 s{sCNT}, s{sCNT}, 1
        s_cmp_lt_u32 s{sCNT}, {TIMEOUT}
        s_waitcnt vmcnt(0)
        s_cbranch_scc1 {Lc}
        {Lo}:
        ''')

    @staticmethod
    def sentinel_check(regs, t):
        out = [f'v_max3_u32 v{t}, v{regs[0]}, v{regs[1]}, v{regs[2]}']
        r = regs[3:]
        while len(r) >= 2:
            out.append(f'v_max3_u32 v{t}, v{t}, v{r[0]}, v{r[1]}')
            r = r[2:]
        if r:
            out.append(f'v_max_u32 v{t}, v{t}, v{r[0]}')
        out.append(f'v_cmp_eq_u32 vcc, -1, v{t}')
        return out

    def ld(self, dst, voff, k, imm, sc=''):
        so = k if isinstance(k, str) else K(k)
        return Ins(f'buffer_load_dwordx4 {dst}, v{voff}, {WSR}, {so} offen{off(imm)}{sc}')

    def load_wqkv(self, part):
        out = I(f'v_add_u32 v{vPF}, s{sB_WQ}, v{vL16}')
        return out + [self.ld(R4(XS[part][ks]), vPF, 4 * part + (ks >> 2), (ks & 3) * 1024, NT) for ks in range(16)]

    def load_w1(self, t, order=None):
        out = I(f'v_add_u32 v{vPF}, s{sB_W1 + t}, v{vL16}')
        return out + [self.ld(R4(XS[t][ks]), vPF, ks >> 2, (ks & 3) * 1024) for ks in (order or range(16))]

    def load_w2(self):
        out = I(f'v_add_u32 v{vPF}, s{sB_W2}, v{vL16}')
        for i in range(11):
            if i == 10:
                out += I(f'v_add_u32 v{vPF}, s{sB_W2x}, v{vL16}')
            out += [self.ld(a_(16 * i + 4 * T, 4), vPF, i, T * 1024, NT) for T in range(4)]
        return out

    def load_wo(self):
        out = I(f'v_add_u32 v{vPF}, s{sB_WO}, v{vL16}')
        self.wo_toks = []
        for q in range(4):
            out += I(f's_add_u32 m0, s{sW16K}, {L_WOW + q * 4096}')
            for n in range(4):
                i = Ins(f'buffer_load_dwordx4 v{vPF}, {WSR}, {K(q)} offen{off(n * 1024)}{NT} lds')
                out.append(i)
                self.wo_toks.append(i)
        return out

    def load_wphi(self, T):
        o = I(f'''
        v_lshrrev_b32 v{T + 8}, 8, v{vL16}
        v_lshlrev_b32 v{T + 8}, 7, v{T + 8}
        v_bfe_u32 v{vA1}, v{vL16}, 4, 2
        v_lshl_add_u32 v{T + 8}, v{vA1}, 3, v{T + 8}
        s_lshl_b32 s{sT0}, s{sH}, 9
        v_add_u32 v{T + 8}, s{sT0}, v{T + 8}''')
        l = []
        for r in range(4):
            l += I(f'buffer_load_dwordx2 {v(T + 2 * r, 2)}, v{T + 8}, {srd(SRD_PHI)}, 0 offen{off(r * 32)}')
        p = []
        for u in range(4):
            for h in range(2):
                p += I(f'v_perm_b32 v{WB + 2 * u + h}, v{T + 2 * (2 * h + 1) + (u >> 1)}, v{T + 2 * (2 * h) + (u >> 1)}, s{sS4 if u & 1 else sS3}')
        return o, l, p

    def cs_addr(self, va):
        return I(f'''
        v_lshrrev_b32 v{va}, 8, v{vL16}
        v_lshlrev_b32 v{va}, 4, v{va}
        s_lshl_b32 s{sT0}, s{sW}, 9
        s_add_u32 s{sT0}, s{sT0}, {L_CS}
        v_add_u32 v{va}, s{sT0}, v{va}''')

    def cs_save(self, va, regs):
        o = I('''s_mov_b32 exec_lo, 0x00010001
        s_mov_b32 exec_hi, 0x00010001''')
        o += [Ins(f'ds_write_b128 v{va}, {v(r, 4)} offset:{sl * 64}') for r, sl in regs]
        return o + I('s_mov_b64 exec, -1')

    def cs_load(self, va, regs):
        return [Ins(f'ds_read_b128 {v(r, 4)}, v{va} offset:{sl * 64}') for r, sl in regs]

    def stats_math(self, S, Q, T, double_ln):
        o = I(f'''
        v_mul_f32 v{S}, {f32(-1.0 / 512)}, v{S}
        v_mul_f32 v{Q}, {f32(1.0 / 512)}, v{Q}
        v_fma_f32 v{Q}, -v{S}, v{S}, v{Q}
        v_max_f32 v{Q}, 0, v{Q}
        v_add_f32 v{T}, {f32(1e-5)}, v{Q}
        v_rsq_f32 v{T}, v{T}''')
        if double_ln:
            o += I(f'''
            v_mul_f32 v{Q}, v{T}, v{Q}
            v_fmaak_f32 v{Q}, v{Q}, v{T}, {f32(1e-5)}
            v_rsq_f32 v{Q}, v{Q}
            v_mul_f32 v{T}, v{T}, v{Q}''')
        return o

    def stats_load(self, inst, T):
        setup = I(f'''
        s_lshl_b32 s{sS4}, s{sRB}, 12
        s_lshl_b32 s{sT1}, s{sW}, 7
        s_add_u32 s{sS4}, s{sS4}, s{sT1}
        s_add_u32 s{sS4}, s{sS4}, {STo(inst)}
        v_bfe_u32 v{T + 4}, v{vL16}, 4, 4
        v_lshrrev_b32 v{T + 5}, 8, v{vL16}
        v_lshlrev_b32 v{T + 6}, 9, v{T + 5}
        v_lshl_add_u32 v{T + 6}, v{T + 4}, 3, v{T + 6}
        s_lshl_b32 s{sT0}, s{sW}, 2
        s_lshl_b32 s{sT1}, s{sW}, 6
        v_lshl_add_u32 v{T + 7}, v{T + 4}, 4, s{sT0}
        v_lshl_add_u32 v{T + 4}, v{T + 4}, 2, s{sT1}
        v_cmp_gt_u32 vcc, 2, v{T + 5}
        v_cndmask_b32 v{T + 7}, v{T + 4}, v{T + 7}, vcc
        v_lshl_add_u32 v{T + 7}, v{T + 5}, 8, v{T + 7}
        v_add_u32 v{T + 7}, {L_STAT}, v{T + 7}''')
        loads = I(f'''
        buffer_load_dwordx2 {v(T, 2)}, v{T + 6}, {WSR}, s{sS4} offen sc1
        buffer_load_dwordx2 {v(T + 2, 2)}, v{T + 6}, {WSR}, s{sS4} offen offset:2048 sc1''')
        return setup, loads

    def stats_combine(self, T, double_ln):
        o = I(f'''
        v_add_f32 v{T}, v{T}, v{T + 2}
        v_add_f32 v{T + 1}, v{T + 1}, v{T + 3}''')
        for sw in ('v_permlane32_swap_b32', 'v_permlane16_swap_b32'):
            o += I(f'''
            v_mov_b32 v{T + 2}, v{T}
            v_mov_b32 v{T + 3}, v{T + 1}
            {sw} v{T}, v{T + 2}
            {sw} v{T + 1}, v{T + 3}
            v_add_f32 v{T}, v{T}, v{T + 2}
            v_add_f32 v{T + 1}, v{T + 1}, v{T + 3}''')
        o += self.stats_math(T, T + 1, T + 2, double_ln)
        o += I(f'''
        s_mov_b32 vcc_lo, 0x0000ffff
        s_mov_b32 vcc_hi, 0x0000ffff
        v_cndmask_b32 v{T + 2}, v{T + 2}, v{T}, vcc
        ds_write_b32 v{T + 7}, v{T + 2}''')
        return o

    def dma_x(self, inst, va):
        setup = I(f'''
        s_add_u32 s{sT0}, s{sW1K}, s{sRB64K}
        s_add_u32 s{sT0}, s{sT0}, {XFo(inst)}
        v_add_u32 v{va}, s{sT0}, v{vL16}''')
        rounds = []
        for n in range(16):
            rounds.append(I(f'''
            s_add_u32 m0, s{sW1K}, {L_ACT + n * 4096}
            buffer_load_dwordx4 v{va}, {WSR}, {K(n)} offen sc1 lds'''))
        return setup, rounds

    def lds_pass(self, vaddr, RING, NR, D, steps, gate, wait_every=1):
        mf, pins, first = [], {}, []
        reads = [Ins(f'ds_read_b128 {v(RING + 4 * (i % NR), 4)}, v{vaddr} offset:{L_ACT + (tt * 16 + ks) * 1024}')
                 for i, (tt, ks, _) in enumerate(steps)]
        pins[-1] = []
        for i in range(D):
            pins[-1] += gate(i) + [reads[i]]
        for i, (tt, ks, fns) in enumerate(steps):
            b = v(RING + 4 * (i % NR), 4)
            first.append(len(mf))
            for n, fn in enumerate(fns):
                mf.append(fn(b))
                idx = len(mf) - 1
                if n == 0 and i + D < len(steps):
                    pins.setdefault(idx, []).extend(gate(i + D) + [reads[i + D]])
                if n == len(fns) - 1 and i + 1 < len(steps) and (i + 1) % wait_every == 0:
                    pins.setdefault(idx, []).append(WaitLG([reads[min(i + wait_every, len(steps) - 1)]]))
        return mf, pins, first

    def x_gate(self, rounds, extra=None):
        g = {0: 0, 4: 1, 8: 3, 16: 5, 24: 7, 32: 11, 48: 15}
        extra = extra or {}
        def gate(i):
            if i in g:
                return [WaitVM([rounds[g[i]][-1]])] + extra.get(i, []) + [Ins('s_barrier')]
            return []
        return gate

    def phi_mfma(self, ACC, P):
        return [mfma(v(P + 4 * u, 4), v(SPARSE + 8 * u + 4 * m, 4), v(ACC + 8 * m, 4), '0' if m == 0 else None)
                for m in range(2) for u in range(4)]

    def kfix(self, ACC, CS, NMU, tt):
        o = [Ins(f'v_fmac_f32 v{ACC + 4 * tt + r}, v{CS + r}, v{NMU + tt}') for r in range(4)]
        d = ACC + 8 * (tt >> 1) + 2 * (tt & 1)
        o += [Ins(f'v_cvt_pk_bf16_f32 v{d + h}, v{ACC + 4 * tt + 2 * h}, v{ACC + 4 * tt + 2 * h + 1}') for h in range(2)]
        return o

    def vfix(self, ACV, CSV, NB, RB_, tt):
        o = [Ins(f'v_fmac_f32 v{ACV + 4 * tt + r}, v{NB + r}, v{CSV}') for r in range(4)]
        o += [Ins(f'v_mul_f32 v{ACV + 4 * tt + r}, v{ACV + 4 * tt + r}, v{RB_ + r}') for r in range(4)]
        d = ACV + 8 * (tt >> 1) + 2 * (tt & 1)
        o += [Ins(f'v_cvt_pk_bf16_f32 v{d + h}, v{ACV + 4 * tt + 2 * h}, v{ACV + 4 * tt + 2 * h + 1}') for h in range(2)]
        return o

    def softmax(self, CB0, P, E, T, dstmap):
        o = []
        e = lambda t: o.append(Ins(t))
        MX, MN, CB, CN = T, T + 1, T + 2, T + 4
        e(f'v_max3_f32 v{MX}, v{P}, v{P + 1}, v{P + 2}')
        e(f'v_min3_f32 v{MN}, v{P}, v{P + 1}, v{P + 2}')
        for i in range(3, 15, 2):
            e(f'v_max3_f32 v{MX}, v{MX}, v{P + i}, v{P + i + 1}')
            e(f'v_min3_f32 v{MN}, v{MN}, v{P + i}, v{P + i + 1}')
        e(f'v_max_f32 v{MX}, v{MX}, v{P + 15}')
        e(f'v_min_f32 v{MN}, v{MN}, v{P + 15}')
        e(f'v_pk_mul_f32 {v(MX, 2)}, {v(MX, 2)}, {v(CB0, 2)} op_sel_hi:[1,0]')
        for i in range(0, 16, 2):
            e(f'v_pk_fma_f32 {v(E + i, 2)}, {v(P + i, 2)}, {v(CB0, 2)}, {v(MX, 2)} op_sel_hi:[1,0,0] neg_lo:[0,0,1] neg_hi:[0,0,1]')
        for i in range(0, 16, 2):
            e(f'v_pk_fma_f32 {v(P + i, 2)}, {v(P + i, 2)}, {v(CB0, 2)}, {v(MX, 2)} op_sel:[0,0,1] op_sel_hi:[1,0,1] neg_lo:[1,0,0] neg_hi:[1,0,0]')
        for i in range(16):
            e(f'v_exp_f32 v{E + i}, v{E + i}')
        for i in range(16):
            e(f'v_exp_f32 v{P + i}, v{P + i}')
        e(f'v_pk_add_f32 {v(CB, 2)}, {v(E, 2)}, {v(E + 2, 2)}')
        e(f'v_pk_add_f32 {v(CN, 2)}, {v(P, 2)}, {v(P + 2, 2)}')
        for i in range(4, 16, 2):
            e(f'v_pk_add_f32 {v(CB, 2)}, {v(CB, 2)}, {v(E + i, 2)}')
            e(f'v_pk_add_f32 {v(CN, 2)}, {v(CN, 2)}, {v(P + i, 2)}')
        e(f'v_add_f32 v{CB}, v{CB}, v{CB + 1}')
        e(f'v_add_f32 v{CN}, v{CN}, v{CN + 1}')
        e(f'v_rcp_f32 v{CB}, v{CB}')
        e(f'v_rcp_f32 v{CN}, v{CN}')
        for i in range(0, 16, 2):
            e(f'v_pk_mul_f32 {v(E + i, 2)}, {v(E + i, 2)}, {v(CB, 2)} op_sel_hi:[1,0]')
        for i in range(8):
            e(f'v_cvt_pk_bf16_f32 v{dstmap(0, i)}, v{E + 2 * i}, v{E + 2 * i + 1}')
        mid = len(o)
        for i in range(0, 16, 2):
            e(f'v_pk_mul_f32 {v(P + i, 2)}, {v(P + i, 2)}, {v(CN, 2)} op_sel_hi:[1,0]')
        for i in range(8):
            e(f'v_cvt_pk_bf16_f32 v{dstmap(1, i)}, v{P + 2 * i}, v{P + 2 * i + 1}')
        return o, mid

    def sparse_build(self):
        return [Ins(f'v_cndmask_b32 v{SPARSE + 8 * u + 2 * gi + h}, 0, v{WB + 2 * u + h}, s[{sM + 2 * gi}:{sM + 2 * gi + 1}]')
                for u in range(4) for gi in range(4) for h in range(2)]

    def pretouch_ox(self, L_, T):
        su = I(f'''
        s_lshl_b32 s{sT0}, s{sH}, 11
        s_add_u32 s{sT0}, s{sT0}, s{sRBH}
        s_add_u32 s{sT0}, s{sT0}, {OFo(L_)}
        s_lshl_b32 s{sT1}, s{sJ}, 11
        s_add_u32 s{sT1}, s{sT1}, s{sW16K}
        s_add_u32 s{sT1}, s{sT1}, s{sRB64K}
        s_add_u32 s{sT1}, s{sT1}, {XFo(2 * L_) - 2048}
        s_lshl_b32 s{sT2}, s{sRB}, 12
        s_lshl_b32 s{sT3}, s{sH}, 7
        s_add_u32 s{sT2}, s{sT2}, s{sT3}
        s_add_u32 s{sT2}, s{sT2}, {STo(2 * L_)}
        v_mov_b32 v{T}, {OOB}
        s_mov_b64 exec, 0xffff
        v_lshl_add_u32 v{T}, v{vL16}, 3, s{sT0}
        s_mov_b32 exec_lo, 0xffff0000
        v_lshl_add_u32 v{T}, v{vL16}, 3, s{sT1}
        s_mov_b64 exec, -1
        v_writelane_b32 v{T}, s{sT2}, 32''')
        return su, I(f'buffer_load_dword v{T}, v{T}, {WSR}, 0 offen sc1')

    def prep(self, T):
        u, cg, ks, st, t0, t1 = sS0, sS1, sS2, sT0, sT1, sT2
        SA, RA, RB_, DA = T + 16, T + 17, T + 18, T + 19
        it = I(f'''
        s_cmp_lt_u32 s{sGW}, 480
        s_cselect_b32 s{t0}, 352, 0
        s_cselect_b32 s{t1}, 0, 480
        s_add_u32 s{t0}, s{t0}, s{t1}
        s_sub_u32 s{u}, s{sGW}, s{t0}
        s_cmp_lt_u32 s{sGW}, 480
        s_cselect_b32 s{t0}, 16, 43
        s_mov_b32 s{t1}, {WS['W2']}
        s_cselect_b32 s{t1}, {WS['WO']}, s{t1}
        s_lshl_b32 s{SRD_P + 2}, s{t0}, 15
        s_and_b32 s{cg}, s{u}, 7
        s_lshr_b32 s{ks}, s{u}, 3
        s_mul_i32 s{t0}, s{t0}, s{cg}
        s_add_u32 s{t0}, s{t0}, s{ks}
        s_lshl_b32 s{t0}, s{t0}, 12
        s_add_u32 s{t1}, s{t1}, s{t0}
        s_cmp_lt_u32 s{sGW}, 824
        s_cselect_b32 s{t1}, s{t1}, {OOB}
        s_cselect_b32 s{SRD_P + 2}, s{SRD_P + 2}, 0
        s_cselect_b32 s{ks}, s{ks}, 0
        s_lshr_b32 s{u}, s{sGW}, 4
        s_and_b32 s{st}, s{sGW}, 15
        s_lshl_b32 s{t0}, s{u}, 6
        s_add_u32 s{t0}, s{t0}, s{st}
        s_lshl_b32 s{t0}, s{t0}, 10
        s_add_u32 s{t0}, s{t0}, {WS['W1']}
        s_cmp_lt_u32 s{sGW}, 352
        s_cselect_b32 s{SRD_P + 2}, {512 * 2752}, s{SRD_P + 2}
        s_cselect_b32 s{cg}, s{u}, s{cg}
        s_cselect_b32 s{ks}, s{st}, s{ks}
        s_cselect_b32 s{t1}, s{t0}, s{t1}
        s_movk_i32 s{st}, 1024
        s_cselect_b32 s{sPD}, 16384, s{st}
        s_cselect_b32 s{st}, 2752, s{st}
        s_cselect_b32 s{u}, 3, 4
        s_cselect_b32 s{t0}, 32, 8
        v_add_u32 v{DA}, s{t1}, v{vL16}
        v_bfe_u32 v{RA}, v{vL16}, 4, 2
        v_lshlrev_b32 v{RA}, s{u}, v{RA}
        v_bfe_u32 v{RB_}, v{vL16}, 6, 2
        v_lshl_add_u32 v{RA}, v{RB_}, 7, v{RA}
        v_lshrrev_b32 v{RB_}, 8, v{vL16}
        v_lshl_add_u32 v{RA}, v{RB_}, 10, v{RA}
        s_lshl_b32 s{u}, s{sW}, 12
        s_add_u32 s{u}, s{u}, {L_TS}
        v_add_u32 v{RA}, s{u}, v{RA}
        v_add_u32 v{RB_}, s{t0}, v{RA}
        s_lshl_b32 s{ks}, s{ks}, 5
        v_lshrrev_b32 v{SA}, 7, v{vL16}
        v_add_u32 v{SA}, s{ks}, v{SA}
        v_mul_u32_u24 v{SA}, s{st}, v{SA}
        v_and_b32 v{vA1}, 0x70, v{vL16}
        s_lshl_b32 s{cg}, s{cg}, 7
        v_add3_u32 v{SA}, v{SA}, v{vA1}, s{cg}
        s_lshl_b32 s{cg}, s{st}, 3''')
        st = cg
        pre, it = it, I(f'''
        s_cmp_lt_u32 s{sGW}, 480
        s_cselect_b64 s[{SRD_P}:{SRD_P + 1}], s[{pWO}:{pWO + 1}], s[{pW2}:{pW2 + 1}]
        s_cmp_lt_u32 s{sGW}, 352
        s_cselect_b64 s[{SRD_P}:{SRD_P + 1}], s[{pW1}:{pW1 + 1}], s[{SRD_P}:{SRD_P + 1}]''')
        dm = []
        for n in range(4):
            it += I(f's_add_u32 m0, s{u}, {n * 1024}')
            if n:
                it += I(f'v_add_u32 v{SA}, s{st}, v{SA}')
            d = Ins(f'buffer_load_dwordx4 v{SA}, {srd(SRD_P)}, 0 offen lds')
            it.append(d)
            dm.append(d)
        fin = [WaitVM([dm[-1]])]
        for q in range(4):
            for hf in range(2):
                fin += I(f'ds_read_b64_tr_b16 {v(T + 4 * q + 2 * hf, 2)}, v{RB_ if q & 1 else RA} offset:{(q >> 1) * 64 + hf * 512}')
        sto = []
        for q in range(4):
            if q:
                sto += I(f'v_add_u32 v{DA}, s{sPD}, v{DA}')
            sto += I(f'buffer_store_dwordx4 {v(T + 4 * q, 4)}, v{DA}, {WSR}, 0 offen sc1')
        return pre, it, fin, sto

    def clears(self, L_, T):
        su = [Ins(f'v_mov_b32 v{T + i}, -1') for i in range(4)]
        su += I(f'''
        v_mov_b32 v{T + 4}, {OOB}
        s_mov_b32 exec_lo, 0x00010001
        s_mov_b32 exec_hi, 0x00010001
        v_lshl_add_u32 v{T + 4}, v{vL16}, 1, s{sS2}
        s_mov_b64 exec, -1
        s_lshl_b32 s{sT0}, s{sRB}, 5
        s_add_u32 s{sT0}, s{sT0}, s{sS3}
        v_bfe_u32 v{T + 5}, v{vL16}, 5, 3
        v_lshlrev_b32 v{T + 5}, 15, v{T + 5}
        v_bfe_u32 v{vA1}, v{vL16}, 8, 1
        v_lshl_add_u32 v{T + 5}, v{vA1}, 4, v{T + 5}
        s_mov_b32 exec_lo, 0xaaaaaaaa
        s_mov_b32 exec_hi, 0
        v_add_u32 v{T + 4}, s{sT0}, v{T + 5}
        s_mov_b64 exec, -1
        v_add_u32 v{T + 5}, s{sS0}, v{vL16}''')
        st = I(f'''
        buffer_store_dwordx4 {v(T, 4)}, v{T + 5}, {WSR}, 0 offen sc1
        buffer_store_dwordx4 {v(T, 4)}, v{T + 4}, {WSR}, 0 offen sc1''')
        return su, st

    def kv_addrs(self, L_):
        return I(f'''
        s_lshl_b32 s{sT0}, s{sH}, 5
        s_add_u32 s{sT0}, s{sT0}, s{sRB}
        s_lshl_b32 s{sS0}, s{sT0}, 10
        s_add_u32 s{sS0}, s{sS0}, {WS["KVP"] + L_ * 1024 * KB}
        s_lshl_b32 s{sS1}, s{sH}, 11
        s_add_u32 s{sS1}, s{sS1}, {WS["ZP"] + L_ * 64 * KB}
        s_lshl_b32 s{sT0}, s{sRB}, 4
        s_add_u32 s{sS2}, s{sS1}, s{sT0}
        s_lshl_b32 s{sS3}, s{sH}, 10
        s_add_u32 s{sS3}, s{sS3}, {WS["KVF"] + L_ * 256 * KB}''')

    def phase_qkv(self, L_):
        A, e, pf = self.A, self.e, self.pf
        ACC, ACV, RING, CSK, CSV, CSQ = 28, 44, 60, 80, 84, 88
        NMU, RSL, XR, T = 92, 96, 97, 98
        P, E, PK, AD = 104, 120, 60, 136
        kmf = lambda tt, ks: (lambda b: mfma(v(ACC + 4 * tt, 4), R4(XS0[ks]), b, '0' if ks == 0 else None))
        vmf = lambda tt, ks: (lambda b: mfma(v(ACV + 4 * tt, 4), b, R4(XS1[ks]), '0' if ks == 0 else None))
        csk = lambda ks: mfma(v(CSK, 4), R4(XS0[ks]), ONE4, '0' if ks == 0 else None)
        csv = lambda ks: mfma(v(CSV, 4), ONE4, R4(XS1[ks]), '0' if ks == 0 else None)
        addr = I(f'''
        v_bfe_u32 v{AD + 1}, v{vL16}, 5, 2
        v_lshlrev_b32 v{AD + 1}, 4, v{AD + 1}
        v_lshl_add_u32 v{AD}, v{vL16}, 2, v{AD + 1}
        v_lshrrev_b32 v{AD + 4}, 6, v{vL16}
        v_bfe_u32 v{AD + 1}, v{vL16}, 7, 2
        v_bfe_u32 v{AD + 2}, v{vL16}, 5, 1
        v_xor_b32 v{AD + 1}, v{AD + 1}, v{AD + 2}
        v_lshlrev_b32 v{AD + 1}, 4, v{AD + 1}
        v_lshl_add_u32 v{AD + 4}, v{AD + 4}, 6, v{AD + 1}
        v_bfe_u32 v{AD + 2}, v{vL16}, 4, 1
        v_lshl_add_u32 v{AD + 4}, v{AD + 2}, 3, v{AD + 4}
        v_mov_b32 v{AD + 5}, {L_TS}
        v_lshl_add_u32 v{AD + 5}, s{sW1K}, 2, v{AD + 5}
        v_add_u32 v{AD}, v{AD + 5}, v{AD}
        v_add_u32 v{AD + 4}, v{AD + 5}, v{AD + 4}
        v_xor_b32 v{AD + 1}, 16, v{AD}
        v_xor_b32 v{AD + 2}, 32, v{AD}
        v_xor_b32 v{AD + 3}, 48, v{AD}
        v_xor_b32 v{AD + 5}, 32, v{AD + 4}''')
        saddr = I(f'''
        v_and_b32 v{T}, 0xf0, v{vL16}
        v_add_u32 v{T}, {L_STAT}, v{T}
        v_lshrrev_b32 v{T + 2}, 8, v{vL16}
        v_lshl_add_u32 v{T + 1}, v{T + 2}, 2, v{T}
        v_lshlrev_b32 v{T + 2}, 4, v{T + 2}
        v_add_u32 v{T + 2}, {L_STAT + 512}, v{T + 2}''')
        RB3 = CSQ
        sreads = I(f'''
        ds_read_b128 {v(NMU, 4)}, v{T}
        ds_read_b32 v{RSL}, v{T + 1} offset:256''')
        for tt in range(4):
            sreads += I(f'''
            ds_read_b128 {v(E + 4 * tt, 4)}, v{T + 2} offset:{tt * 64}
            ds_read_b128 {v(P + 4 * tt if tt < 3 else RB3, 4)}, v{T + 2} offset:{256 + tt * 64}''')
        rsl = I(f'v_mul_f32 v{RSL}, {f32(1.4426950408889634)}, v{RSL}')
        fix = lambda tt: self.kfix(ACC, CSK, NMU, tt) + self.vfix(ACV, CSV, E + 4 * tt, P + 4 * tt if tt < 3 else RB3, tt)

        if L_ == 0:
            tail = self.qkv0_pass(ACC, ACV, RING, XR, T, P, E, AD, kmf, vmf, csk, csv, addr, saddr, sreads)
            xr = XR
            A.add(tail[0])
            seq = list(rsl)
            for tt in range(4):
                for h in range(2):
                    seq += I(f'v_pk_fma_f32 {v(ACC + 4 * tt + 2 * h, 2)}, {v(CSK + 2 * h, 2)}, {v(NMU + (tt & 2), 2)}, {v(ACC + 4 * tt + 2 * h, 2)} op_sel:[0,{tt & 1},0] op_sel_hi:[1,{tt & 1},1]')
            for i in range(6):
                seq += I(f'v_pk_fma_f32 {v(ACV + 2 * i, 2)}, {v(E + 2 * i, 2)}, {v(CSV, 2)}, {v(ACV + 2 * i, 2)}')
            for i in range(6):
                seq += I(f'v_pk_mul_f32 {v(ACV + 2 * i, 2)}, {v(ACV + 2 * i, 2)}, {v(P + 2 * i, 2)}')
            for i in range(8):
                seq += I(f'v_cvt_pk_bf16_f32 v{ACC + 8 * (i >> 2) + (i & 3)}, v{ACC + 2 * i}, v{ACC + 2 * i + 1}')
            A.add(seq)
            vcv = [Ins(f'v_cvt_pk_bf16_f32 v{ACV + 8 * (i >> 2) + (i & 3)}, v{ACV + 2 * i}, v{ACV + 2 * i + 1}') for i in range(6)]
        else:
            ST = 128
            su, sl = self.stats_load(1, ST)
            du, rounds = self.dma_x(1, XR)
            pu, ptl = self.pretouch_ox(1, 143)
            A.add(su + du + pu + self.kv_addrs(L_) + self.cs_addr(vA0))
            A.add(self.cs_load(vA0, [(CSK, 0)]))
            A.add(I(f'''
            v_bfe_u32 v{vA0}, v{vL16}, 4, 4
            v_lshl_add_u32 v{vA0}, v{vA0}, 2, s{sT0}
            ds_read_b32 v{CSV}, v{vA0} offset:{5 * 64}'''))
            self.signal(self.x_stores, 3)
            n = sum(1 for x in pf.q if x.kind == 'vmem') - 16
            A.add(pf.take(n))
            self.wait_flags(3)
            self.stamp('x2wait')
            NR0 = int(OPT.get('nr0', 6))
            for r in rounds[:NR0]:
                A.add(r)
            steps = [(tt, ks, [kmf(tt, ks), vmf(tt, ks)]) for tt in range(4) for ks in range(16)]
            sc = self.stats_combine(ST, False)
            mf, pins, first = self.lds_pass(vL16, RING, 5, 4, steps, self.x_gate(rounds, {32: [WaitLG([sc[-1]])]}))
            dm = paced(rounds[NR0] + sl + [x for r in rounds[NR0 + 1:] for x in r] + (ptl if int(OPT.get('pt', 1)) else []), 0, 4)
            b32 = first[32 - 4] + 1
            f1 = at(0, saddr + addr) + at(30, sc) + at(b32, sreads) + at(first[32] + 4, rsl + fix(0) + fix(1)) \
                + at(first[48] + 4, fix(2)) + at(first[56], self.sparse_build())
            f2 = paced(pf.take(16), 54, 4.6)
            body, left = sched(mf, pins, [dm, f1, f2])
            A.add(body)
            print('kv pass leftovers', [len(x) for x in left])
            A.add(left[0] + left[2] + self.kfix(ACC, CSK, NMU, 3) + left[1])
            xr = vL16
        self.stamp('kvpass')
        body, left = sched(self.phi_mfma(ACC, P), {}, [at(0, (vcv if L_ == 0 else []) + self.vfix(ACV, CSV, E + 12, RB3, 3))])
        A.add(body + left[0])
        sm, mid = self.softmax(RSL, P, E, T, lambda sg, i: PK + 8 * sg + i)
        wr = [Ins(f'ds_write_b128 v{AD + q}, {v(PK + 4 * q, 4)}') for q in range(4)]
        AF = E
        rd = [[Ins(f'ds_read_b64_tr_b16 {v(AF + 8 * sg + 4 * m + 2 * hf, 2)}, v{AD + 4 + sg} offset:{(32 * m + 16 * hf) * 64}')
               for m in range(2) for hf in range(2)] for sg in range(2)]
        seq = sm[:mid] + wr[:2] + rd[0] + sm[mid:] + wr[2:] + rd[1]
        if L_ == 0:
            chk = 60 + 16
            pl = I(f'buffer_load_dwordx4 {v(chk, 4)}, v{vPF}, {WSR}, 0 offen sc1')
            seq = spread(seq, pl, float(OPT.get('plat', 0.8)), 1.0)
            seq = spread(seq, tail[1], 0.0, 0.3)
            if self.pflag_late:
                k = int(len(seq) * float(OPT.get('pfat', 0.3)))
                while seq[k].kind == 'vmem' or seq[k - 1].kind == 'salu':
                    k += 1
                seq[k:k] = self.pflag_late
            A.add(seq)
        else:
            pf.push(self.load_w1(0))
            pf.push(self.load_w1(1, range(8, 16)))
            A.add(spread(seq, pf.take(int(OPT.get('n_kepi1', 10)))))
        KV, Z = P, P + 8
        VP = lambda m: v(ACV + 8 * m, 4)
        mm = []
        for sg in range(2):
            mm += [mfma(v(KV + 4 * sg, 4), v(AF + 8 * sg + 4 * m, 4), VP(m), '0' if m == 0 else None) for m in range(2)]
            mm += [mfma(v(Z + 4 * sg, 4), v(AF + 8 * sg + 4 * m, 4), ONE4, '0' if m == 0 else None) for m in range(2)]
        sa = I(f'v_lshlrev_b32 v{vA0}, 1, v{vL16}')
        body, left = sched(mm, {}, [at(0, sa)])
        A.add(body + left[0])
        KB_, ZB_ = PK, PK + 4
        for i in range(4):
            e(f'v_cvt_pk_bf16_f32 v{KB_ + i}, v{KV + 2 * i}, v{KV + 2 * i + 1}')
        for i in range(4):
            e(f'v_min_u32 v{KB_ + i}, -2, v{KB_ + i}')
        e(f'buffer_store_dwordx4 {v(KB_, 4)}, v{vL16}, {WSR}, s{sS0} offen sc1')
        for i in range(4):
            e(f'v_cvt_pk_bf16_f32 v{ZB_ + i}, v{Z + 2 * i}, v{Z + 2 * i + 1}')
        for i in range(4):
            e(f'v_min_u32 v{ZB_ + i}, -2, v{ZB_ + i}')
        e('s_mov_b32 exec_lo, 0x00010001')
        e('s_mov_b32 exec_hi, 0x00010001')
        e(f'buffer_store_dwordx4 {v(ZB_, 4)}, v{vA0}, {WSR}, s{sS2} offen sc1')
        e('s_mov_b64 exec, -1')
        self.stamp('kepi')
        if L_ == 0:
            A.wait_vm(self.q_toks)
            self.stamp('qarr')
            A.wait_vm(pl)
            self.stamp('plarr')
            Lc, Lo, Le = self.label(), self.label(), self.label()
            xor4 = lambda sr: '\n'.join(f'v_xor_b32 v{chk + i}, s{sr}, v{chk + i}' for i in range(4))
            or4 = f'v_or3_b32 v{vA0}, v{chk}, v{chk + 1}, v{chk + 2}\nv_or_b32 v{vA0}, v{vA0}, v{chk + 3}'
            A.raw(f'''
            s_cmp_lg_u32 s{sW}, 0
            s_cbranch_scc1 {Le}
            s_mov_b32 s{sCNT}, 0
            {Lc}:
            {xor4(sNONCE)}
            {or4}
            v_cmp_lt_u32 vcc, 7, v{vA0}
            s_cbranch_vccz {Lo}
            s_sleep 2
            {pl[0].text}
            s_add_u32 s{sCNT}, s{sCNT}, 1
            s_cmp_lt_u32 s{sCNT}, {TIMEOUT}
            s_waitcnt vmcnt(0)
            s_cbranch_scc1 {Lc}
            {Lo}:
            {xor4(sXCC)}
            {or4}
            v_cmp_ne_u32 vcc, 0, v{vA0}
            s_lshl_b32 s{sT0}, s{sRB}, 1
            s_lshr_b64 s[{sT2}:{sT3}], vcc, s{sT0}
            s_and_b32 s{sT2}, s{sT2}, 3
            s_cselect_b32 s{sFAST}, 0, {0 if FORCE_SLOW else 1}
            s_cmp_lg_u32 s2, 0
            s_cbranch_scc1 {Le}
            v_mov_b32 v{vA0}, s{sNONCE}
            s_mov_b64 exec, 1
            buffer_store_dword v{vA0}, v{vL16}, {WSR}, 0 offen sc1
            s_mov_b64 exec, -1
            {Le}:''')
            e('s_barrier')
            self.stamp('prepchk')
            for ks in range(16):
                for hf in range(2):
                    e(f'ds_read_b64_tr_b16 {R2(XS2[ks], hf)}, v{self.vTR} offset:{ks * 4096 + hf * 512}')
            QF = 120
            A.add(I(f'''
            s_and_b32 s{sT0}, s{sRB}, 15
            s_lshl_b32 s{sT1}, s{sT0}, 12
            v_add_u32 v{vA0}, s{sT1}, v{self.vTR}
            ds_read_b64_tr_b16 {v(QF, 2)}, v{vA0}
            ds_read_b64_tr_b16 {v(QF + 2, 2)}, v{vA0} offset:512
            s_add_u32 s{sT0}, s{sT0}, s{sROT4}
            s_and_b32 s{sT0}, s{sT0}, 15
            s_add_u32 s{sT0}, s{sT0}, 32
            s_lshl_b32 s{sT0}, s{sT0}, 10
            s_add_u32 s{sT0}, s{sT0}, s{sB_WQ}
            s_cmp_lt_u32 s{sRB}, 16
            s_cselect_b32 s{sT0}, s{sT0}, {OOB}
            v_add_u32 v{vA1}, s{sT0}, v{vL16}'''))
            A.add(self.cs_addr(vA3) + self.cs_save(vA3, [(CSK, 0)]))
            A.add(I(f'''
            v_lshrrev_b32 v{vA0}, 2, v{vL16}
            v_add_u32 v{vA0}, s{sT0}, v{vA0}
            s_mov_b64 exec, 0xffff
            ds_write_b32 v{vA0}, v{CSV} offset:{5 * 64}
            s_mov_b64 exec, -1'''))
            A.wait_lg()
            e('s_barrier')
            late = I(f'buffer_store_dwordx4 {v(QF, 4)}, v{vA1}, {WSR}, 0 offen sc1')
            A.add(late + self.kv_addrs(1))
            cu, cst = self.clears(1, 124)
            A.add(cu + cst + self.kv_addrs(0))
            late += cst
            pf.push(self.load_wo())
            pf.push(self.load_w1(0))
            pf.push(self.load_w1(1, range(8, 16)))
        else:
            A.add(self.cs_addr(vA0) + self.cs_load(vA0, [(CSQ, 1)]))
        A.add(I(f'''
        s_lshl_b32 s{sS0}, s{sH}, 15
        s_lshl_b32 s{sT0}, s{sRB}, 5
        s_add_u32 s{sS0}, s{sS0}, s{sT0}
        s_add_u32 s{sS0}, s{sS0}, {WS["KVP"] + L_ * 1024 * KB}
        s_add_u32 s{sS2}, s{sS3}, s{sT0}
        s_lshl_b32 s{sT0}, s{sX}, 15
        s_add_u32 s{sS3}, s{sS3}, s{sT0}
        s_lshl_b32 s{sS4}, s{sH}, 11
        s_add_u32 s{sS4}, s{sS4}, s{sRBH}
        s_add_u32 s{sS4}, s{sS4}, {OFo(L_)}'''))
        steps = []
        for ks in range(16):
            for tt in range(4):
                fns = [lambda b, tt=tt, ks=ks: mfma(v(ACC + 4 * tt, 4), R4(XS2[ks]), b, '0' if ks == 0 else None)]
                if tt == 0 and L_ == 0:
                    fns.append(lambda b, ks=ks: mfma(v(CSQ, 4), R4(XS2[ks]), ONE4, '0' if ks == 0 else None))
                steps.append((tt, ks, fns))
        mf, pins, first = self.lds_pass(xr, ACV, 9, 7, steps, lambda i: [], wait_every=2)
        H1, ZL, SEL, SEL8 = 80, 28, 136, 132
        GA, ZA, FA = 84, 85, 86
        su = I(f'''
        v_lshrrev_b32 v{GA}, 5, v{vL16}
        v_and_b32 v{FA}, 16, v{vL16}
        v_lshl_add_u32 v{GA}, v{GA}, 10, v{FA}
        v_and_b32 v{ZA}, 0xf0, v{vL16}
        v_lshrrev_b32 v{vA0}, 8, v{vL16}
        v_lshl_add_u32 v{ZA}, v{vA0}, 9, v{ZA}
        v_lshl_add_u32 v{FA}, v{vA0}, 3, v{FA}
        v_bfe_u32 v{vA1}, v{vL16}, 5, 3
        v_lshl_add_u32 v{FA}, v{vA1}, 15, v{FA}
        v_bfe_u32 v{vA1}, v{vL16}, 6, 2
        v_cmp_eq_u32 s[{sT2}:{sT3}], v{vA0}, v{vA1}
        v_bfe_u32 v{vA0}, v{vL16}, 4, 1
        v_lshlrev_b32 v{vA0}, 4, v{vA0}
        v_mov_b32 v{vA1}, 0x3f80
        v_lshlrev_b32 v{vA0}, v{vA0}, v{vA1}
        v_bfe_u32 v{vA1}, v{vL16}, 5, 3''')
        for m in range(4):
            su += I(f'''
            v_cmp_eq_u32 vcc, {m}, v{vA1}
            v_mov_b32 v{SEL + (0, 1, 4, 5)[m]}, 0
            v_nop
            v_cndmask_b32 v{SEL8 + m}, 0, v{vA0}, vcc''')
        su += I(f'''
        v_cndmask_b32 v{vA0}, 0, v{vA0}, s[{sT2}:{sT3}]
        v_and_b32 v{vA1}, 1, v{vA1}
        v_cmp_eq_u32 vcc, 0, v{vA1}
        v_cndmask_b32 v{SEL + 2}, 0, v{vA0}, vcc
        v_cndmask_b32 v{SEL + 3}, v{vA0}, 0, vcc''')
        h1 = I(f'''
        buffer_load_dwordx4 {v(H1, 4)}, v{GA}, {WSR}, s{sS0} offen sc1''')
        zl = I(f'''
        buffer_load_dwordx4 {v(ZL, 4)}, v{ZA}, {WSR}, s{sS1} offen sc1
        buffer_load_dwordx4 {v(ZL + 4, 4)}, v{ZA}, {WSR}, s{sS1} offen offset:256 sc1''')
        h1at = int(OPT.get(f'h1at{L_}', 40 if L_ else 20))
        pf.push(self.load_w1(2))
        nq = int(OPT.get(f'n_q{L_}', 14))
        qpf = paced(pf.take(nq), 0, len(mf) / max(nq, 1))
        for idx, it in qpf:
            if it.kind == 'vmem' and it.dst and it.dst[0][0] == 'v' and int(it.dst[0][1:]) >= 192:
                assert idx >= first[min(4 * ((int(it.dst[0][1:]) - 192) // 4) + 4, 63)], 'Q weights still live'
        body, left = sched(mf, pins, [at(0, su) + at(h1at, h1), qpf])
        print('q pass leftovers', [len(x) for x in left])
        A.add(body + left[0] + left[1])
        for tt in range(4):
            for h in range(2):
                e(f'v_pk_fma_f32 {v(ACC + 4 * tt + 2 * h, 2)}, {v(CSQ + 2 * h, 2)}, {v(NMU + (tt & 2), 2)}, {v(ACC + 4 * tt + 2 * h, 2)} op_sel:[0,{tt & 1},0] op_sel_hi:[1,{tt & 1},1]')
        for i in range(8):
            e(f'v_cvt_pk_bf16_f32 v{ACC + 8 * (i >> 2) + (i & 3)}, v{ACC + 2 * i}, v{ACC + 2 * i + 1}')
        A.add(self.phi_mfma(ACC, P))
        self.stamp('qpass')
        self.retry(h1, self.sentinel_check(list(range(H1, H1 + 4)), vA0))
        self.stamp('hop1')
        D1, ZS = 60, 64
        A.add([mfma(v(D1, 4), v(SEL8, 4), v(H1, 4), '0')])
        A.add(zl)
        for rot in (8, 4, 2):
            for i in range(4):
                e(f'v_add_f32_dpp v{D1 + i}, v{D1 + i}, v{D1 + i} row_ror:{rot} row_mask:0xf bank_mask:0xf')
        e(f'v_cvt_pk_bf16_f32 v{D1}, v{D1}, v{D1 + 1}')
        e(f'v_cvt_pk_bf16_f32 v{D1 + 1}, v{D1 + 2}, v{D1 + 3}')
        e(f'v_min_u32 v{D1}, -2, v{D1}')
        e(f'v_min_u32 v{D1 + 1}, -2, v{D1 + 1}')
        if L_ == 0:
            A.wait_vm(late)
        e('s_mov_b32 exec_hi, 0')
        e(f'buffer_store_dwordx2 {v(D1, 2)}, v{FA}, {WSR}, s{sS2} offen sc1')
        e('s_mov_b64 exec, -1')
        RQ, AZ, AKV = 44, 72, 76
        sm, _ = self.softmax(RSL, P, E, T, lambda sg, i: RQ + 4 * (i >> 1) + 2 * sg + (i & 1))
        zr = []
        for rot in (8, 4, 2, 1):
            zr += [Ins(f'v_add_f32_dpp v{ZS + i}, v{ZS + i}, v{ZS + i} row_ror:{rot} row_mask:0xf bank_mask:0xf') for i in range(8)]
        zr += [Ins(f'v_cvt_pk_bf16_f32 v{AZ + i}, v{ZS + 2 * i}, v{ZS + 2 * i + 1}') for i in range(4)]
        sw = []
        for p in range(4):
            sw += I(f'''v_permlane32_swap_b32 v{RQ + p}, v{RQ + 8 + p}
            v_permlane32_swap_b32 v{RQ + 4 + p}, v{RQ + 12 + p}''')
        for p in range(4):
            sw += I(f'''v_permlane16_swap_b32 v{RQ + p}, v{RQ + 4 + p}
            v_permlane16_swap_b32 v{RQ + 8 + p}, v{RQ + 12 + p}''')
        h2 = I(f'buffer_load_dwordx4 {v(AKV, 4)}, v{vL16}, {WSR}, s{sS3} offen sc1')
        pf.push(self.load_w1(1, range(8)))
        if L_ == 0:
            A.add(self.cs_save(vA3, [(CSQ, 1)]))
        frac = float(OPT.get('h2at', 0.85))
        seq = sm
        seq = spread(seq, pf.take(int(OPT.get(f'n_qs{L_}', 10))), 0.0, frac)
        seq = spread(seq, h2, frac, 1.0)
        A.add(seq)
        self.retry(zl, self.sentinel_check(list(range(ZL, ZL + 8)), vA0))
        zm = []
        for n in range(2):
            zm += [mfma(v(ZS, 4), v(SEL + 2, 4), v(ZL + 4 * n, 4), '0' if n == 0 else None),
                   mfma(v(ZS + 4, 4), v(SEL, 4), v(ZL + 4 * n, 4), '0' if n == 0 else None)]
        body, left = sched(zm, {}, [at(0, sw)])
        A.add(spread(body + left[0] + zr, pf.take(int(OPT.get(f'n_z{L_}', 4)))))
        NUM, DEN = 80, 96
        A.add([mfma(v(DEN + 4 * tt, 4), v(AZ, 4), v(RQ + 4 * tt, 4), '0') for tt in range(4)])
        A.add(pf.take(int(OPT.get(f'n_h2{L_}', 0))))
        for tt in range(4):
            e(f'v_add_f32 v{DEN + 4 * tt}, {f32(1e-6)}, v{DEN + 4 * tt}')
        for tt in range(4):
            e(f'v_rcp_f32 v{DEN + 4 * tt}, v{DEN + 4 * tt}')
        self.stamp('qepi')
        self.retry(h2, self.sentinel_check(list(range(AKV, AKV + 4)), vA0))
        self.stamp('hop2')
        A.add([mfma(v(NUM + 4 * tt, 4), v(AKV, 4), v(RQ + 4 * tt, 4), '0') for tt in range(4)])
        OP = 112
        st = []
        for tp in range(2):
            for i in range(8):
                e(f'v_mul_f32 v{NUM + 8 * tp + i}, v{NUM + 8 * tp + i}, v{DEN + 8 * tp + (i & 4)}')
            for i in range(4):
                e(f'v_cvt_pk_bf16_f32 v{OP + 4 * tp + i}, v{NUM + 8 * tp + 2 * i}, v{NUM + 8 * tp + 2 * i + 1}')
            e(f'v_permlane16_swap_b32 v{OP + 4 * tp}, v{OP + 4 * tp + 2}')
            e(f'v_permlane16_swap_b32 v{OP + 4 * tp + 1}, v{OP + 4 * tp + 3}')
            st.append(e(f'buffer_store_dwordx4 {v(OP + 4 * tp, 4)}, v{vL16}, {WSR}, s{sS4} offen{off(tp * 1024)}{SC0(L_ == 0)}'))
        self.stamp('o')
        A.add(pf.take(int(OPT.get(f'n_o{L_}', 5))))
        self.o_stores = st + (self.wo_toks if L_ == 0 else [])

    def qkv0_pass(self, ACC, ACV, RING, XR, T, P, E, AD, kmf, vmf, csk, csv, addr, saddr, sreads):
        A = self.A
        GR, SM, SF = P, P + 4, P + 8
        vS = E + 4
        trs = lambda c: [Ins(f'ds_read_b64_tr_b16 {R2(XS[p][2 * c + kl], hf)}, v{self.vTR} offset:{(c & 3) * 16384 + (2 * p + kl) * 4096 + hf * 512}')
                         for kl in range(2) for p in range(2) for hf in range(2)]
        tr = [trs(c) for c in range(8)]
        sks = {0: [0, 1], 1: [2, 3], 2: [4, 5], 3: [6, 7], 4: [8, 9, 10, 11], 5: [12, 13, 14, 15]}
        steps = []
        srd_ = {}
        n = 0
        for c in range(8):
            todo = list(sks.get(c, []))
            for kl in range(2):
                ks = 2 * c + kl
                for tt in range(4):
                    fns = [kmf(tt, ks), vmf(tt, ks)]
                    if tt == 3:
                        fns += [lambda b, ks=ks: csk(ks), lambda b, ks=ks: csv(ks)]
                    if todo and tt in (1, 3) and (len(sks[c]) == 4 or tt == 1):
                        k2 = todo.pop(0)
                        fb = v(SF + 4 * (n % 3), 4)
                        srd_[len(steps)] = Ins(f'ds_read_b128 {fb}, v{vS} offset:{L_ACT + k2 * 1024}')
                        fns += [lambda b, fb=fb, k2=k2: mfma(v(GR, 4), fb, fb, '0' if k2 == 0 else None),
                                lambda b, fb=fb, k2=k2: mfma(v(SM, 4), ONE4, fb, '0' if k2 == 0 else None)]
                        n += 1
                    steps.append((tt, ks, fns))
        sf = I(f'''
        v_bfe_u32 v{vA0}, v{vL16}, 4, 2
        v_cmp_eq_u32 vcc, 1, v{vA0}
        v_cmp_eq_u32 s[{sT2}:{sT3}], 2, v{vA0}
        v_bfe_u32 v{SF + 2}, v{vL16}, 4, 4
        v_cndmask_b32 v{GR}, v{GR}, v{GR + 1}, vcc
        v_cmp_eq_u32 vcc, 3, v{vA0}
        v_cndmask_b32 v{GR}, v{GR}, v{GR + 2}, s[{sT2}:{sT3}]
        v_lshrrev_b32 v{SF + 3}, 8, s{sW1K}
        v_cndmask_b32 v{GR}, v{GR}, v{GR + 3}, vcc
        v_lshl_add_u32 v{SF + 1}, v{SF + 2}, 4, v{SF + 3}
        v_lshlrev_b32 v{SF + 3}, 4, v{SF + 3}
        v_lshl_add_u32 v{SF + 2}, v{SF + 2}, 2, v{SF + 3}
        v_add_u32 v{SF + 1}, {L_STAT}, v{SF + 1}
        v_add_u32 v{SF + 2}, {L_STAT + 512}, v{SF + 2}''')
        sf += self.stats_math(SM, GR, SF, False)
        swr = I(f'''
        s_mov_b32 exec_lo, 0x00f0000f
        s_mov_b32 exec_hi, 0xf0000f00
        ds_write_b32 v{SF + 1}, v{SM}
        ds_write_b32 v{SF + 1}, v{SF} offset:256
        ds_write_b32 v{SF + 2}, v{SM}
        ds_write_b32 v{SF + 2}, v{SF} offset:256
        s_mov_b64 exec, -1''')
        Lf = self.label()
        B = Asm()
        B.raw(f'''
        s_cmp_lg_u32 s{sW}, 0
        s_cbranch_scc1 {Lf}
        s_lshl_b32 s{sT0}, s{sRB}, 8
        s_lshr_b32 s{sT1}, s{sJ}, 2
        s_mul_i32 s{sT1}, s{sT1}, 112
        s_add_u32 s{sT0}, s{sT0}, s{sT1}
        s_lshl_b32 s{sT1}, s{sJ}, 2
        s_add_u32 s{sT0}, s{sT0}, s{sT1}
        s_add_u32 s{sT0}, s{sT0}, {WS['PFLAG']}
        s_or_b32 s{sT1}, s{sNONCE}, s{sXCC}
        v_mov_b32 v{vA1}, s{sT1}
        v_lshlrev_b32 v215, 9, v{vL16}
        s_mov_b64 exec, 0xff
        buffer_store_dword v{vA1}, v215, {WSR}, s{sT0} offen sc1
        s_mov_b64 exec, -1
        {Lf}:''')
        pflag_c = int(OPT.get('pflag', 3))
        def wq_pub(c):
            Lw = self.label()
            C = Asm()
            C.raw(f'''
            s_cmp_lg_u32 s{sPC_}, {c}
            s_cbranch_scc1 {Lw}
            ds_read_b64_tr_b16 v[216:217], v220 offset:{(c & 3) * 16384}
            ds_read_b64_tr_b16 v[218:219], v220 offset:{(c & 3) * 16384 + 512}
            s_waitcnt lgkmcnt(0)
            buffer_store_dwordx4 v[216:219], v221, {WSR}, 0 offen sc1
            {Lw}:''')
            return C.items

        def gate(i):
            out = []
            if i % 8 == 0:
                c = i // 8
                w = list(self.c_toks[c])
                if c == pflag_c:
                    w += self.prep_stores
                out += [WaitVM(w), WaitLG(tr[c - 1] if c else []), Ins('s_barrier')]
                if c == pflag_c:
                    out += B.items
                if PROFILE and (c in (0, 2, 4, 6) or int(OPT.get('fine', 0))):
                    self.names.append(f'gate{c}')
                    out += I(f'''s_memtime s[{sTM}:{sTM + 1}]
                    s_waitcnt lgkmcnt(0)
                    v_writelane_b32 v{vSTAMP}, s{sTM}, {self.nstamp}''')
                    self.nstamp += 1
                out += tr[c][:4] if c == 0 else tr[c][:1]
            return out
        A.add(I(f'v_add_u32 v{vS}, s{sW16K}, v{XR}'))
        mf, pins, first = self.lds_pass(XR, RING, 5, 4, steps, gate)
        for i, r in srd_.items():
            pins.setdefault(first[max(i - 2, 0)] + 1, []).append(r)
        trs_, dms = [], []
        for c in range(8):
            g0 = first[8 * c - 4] if c else -1
            for k, r in enumerate(tr[c][4:] if c == 0 else tr[c][1:]):
                trs_.append((g0 + 1 + k, r))
            pins.setdefault(first[8 * c + 2], []).extend(wq_pub(c))
            dms += paced(self.later[c], g0 + 2, float(OPT.get('dpace', 3)) if c else 2)
        f0 = []
        f1 = at(0, saddr + addr) + at(first[33], self.masks) + at(first[int(OPT.get('wpat', 40))], self.wphi_perm) \
            + at(first[48] + 1, sf) + at(0, self.sparse_build()) + at(first[59], self.kv_addrs(0))
        pins.setdefault(first[56] + 1, []).extend(swr)
        pins.setdefault(first[58] + 1, []).extend(([WaitVM(self.prep_stores)] if pflag_c == 8 else []) + [WaitLG([swr[-2]] + tr[7]), Ins('s_barrier')] + (B.items if pflag_c == 8 else []))
        self.pflag_late = [WaitVM(self.prep_stores), Ins('s_barrier')] + B.items if pflag_c == 9 else []
        b7 = first[58] + 2
        body, left = sched(mf, pins, [trs_, f0, dms, f1, at(b7, sreads)], budget=int(OPT.get('b0', 12)))
        del left[1]
        print('qkv0 leftovers', [len(x) for x in left])
        assert not left[0]
        order = {id(x): k for k, x in enumerate(body)}
        assert order[id(sf[-1])] < order[id(swr[0])]
        assert order[id(self.xlast)] < order[id(self.masks[0])]
        for c in range(8):
            for k, r in enumerate(tr[c]):
                assert order[id(r)] < order[id(mf[first[8 * c + (k & 4)]])]
        A.add(body)
        return left[3] + left[2] + left[1], self.c_dma[11]

    def unpack_res(self, ACC, BIAS=None):
        e = self.e
        for i in range(8):
            e(f'v_lshlrev_b32 v{ACC + 2 * i}, 16, v{RES + i}')
            e(f'v_and_b32 v{ACC + 2 * i + 1}, s{sMASKHI}, v{RES + i}')
        if BIAS is not None:
            for i in range(8):
                e(f'v_lshlrev_b32 v{vA0}, 16, v{BIAS + i}')
                e(f'v_and_b32 v{vA1}, s{sMASKHI}, v{BIAS + i}')
                e(f'v_add_f32 v{ACC + 2 * i}, v{ACC + 2 * i}, v{vA0}')
                e(f'v_add_f32 v{ACC + 2 * i + 1}, v{ACC + 2 * i + 1}, v{vA1}')

    def rowmajor_off(self, va, vt):
        return I(f'''
        v_bfe_u32 v{va}, v{vL16}, 4, 4
        v_lshrrev_b32 v{vt}, 8, v{vL16}
        v_lshlrev_b32 v{vt}, 4, v{vt}
        v_lshl_add_u32 v{va}, v{va}, 10, v{vt}
        s_lshl_b32 s{sT1}, s{sJ}, 7
        s_add_u32 s{sT0}, s{sW16K}, s{sT1}
        s_add_u32 s{sT0}, s{sT0}, s{sRB64K}
        v_add_u32 v{va}, s{sT0}, v{va}''')

    def x_addrs(self, inst, va, T):
        if inst < 0:
            return self.rowmajor_off(va, T)
        o = I(f'''
        s_lshl_b32 s{sT1}, s{sJ}, 11
        s_add_u32 s{sS0}, s{sW16K}, s{sT1}
        s_add_u32 s{sS0}, s{sS0}, s{sRB64K}
        s_add_u32 s{sS0}, s{sS0}, {XFo(inst)}
        s_lshl_b32 s{sS1}, s{sRB}, 12
        s_lshl_b32 s{sT1}, s{sH}, 7
        s_add_u32 s{sS1}, s{sS1}, s{sT1}
        s_add_u32 s{sS1}, s{sS1}, {STo(inst)}
        v_bfe_u32 v{va}, v{vL16}, 4, 4
        v_lshrrev_b32 v{T}, 9, v{vL16}
        v_lshlrev_b32 v{T}, 2, v{T}
        v_lshl_add_u32 v{va}, v{va}, 3, v{T}''')
        return o

    def finish_x(self, ACC, inst, va, T):
        e = self.e
        st = []
        for a in range(2):
            for r in range(4):
                e(f'v_cvt_pk_bf16_f32 v{RES + 4 * a + r}, v{ACC + 8 * a + 2 * r}, v{ACC + 8 * a + 2 * r + 1}')
            if inst < 0:
                st.append(e(f'buffer_store_dwordx4 {v(RES + 4 * a, 4)}, v{va}, {srd(SRD_OUT)}, 0 offen{off(a * 64)}{OPT.get("outsc", "")}'))
            else:
                st.append(e(f'buffer_store_dwordx4 {v(RES + 4 * a, 4)}, v{vL16}, {WSR}, s{sS0} offen{off(a * 1024)}{SC0(inst == 0)}'))
        if inst < 0:
            return st
        e(f'v_dot2_f32_bf16 v{T}, v{RES}, s{sONE}, 0')
        e(f'v_dot2_f32_bf16 v{T + 1}, v{RES}, v{RES}, 0')
        for i in range(1, 8):
            e(f'v_dot2_f32_bf16 v{T}, v{RES + i}, s{sONE}, v{T}')
            e(f'v_dot2_f32_bf16 v{T + 1}, v{RES + i}, v{RES + i}, v{T + 1}')
        e(f'v_permlane32_swap_b32 v{T}, v{T + 1}')
        e(f'v_add_f32 v{T}, v{T}, v{T + 1}')
        e(f'v_mov_b32 v{T + 1}, v{T}')
        e(f'v_permlane16_swap_b32 v{T}, v{T + 1}')
        e('s_mov_b32 exec_lo, 0xffff')
        e('s_mov_b32 exec_hi, 0xffff')
        e(f'v_add_f32 v{T}, v{T}, v{T + 1}')
        st.append(e(f'buffer_store_dword v{T}, v{va}, {WSR}, s{sS1} offen{SC0(inst == 0)}'))
        e('s_mov_b64 exec, -1')
        return st

    def phase_wo(self, L_):
        A, e, pf = self.A, self.e, self.pf
        ACC, RING, NR, D, BUF = 28, 44, 8, 7, 76
        vG, vW, vS, T = 140, 141, 142, 143
        self.unpack_res(ACC)
        A.add(I(f'''
        s_lshr_b32 s{sT0}, s{sW}, 1
        s_lshl_b32 s{sT0}, s{sT0}, 10
        s_and_b32 s{sT1}, s{sW}, 1
        s_lshl_b32 s{sT1}, s{sT1}, 8
        s_add_u32 s{sT0}, s{sT0}, s{sT1}
        s_add_u32 s{sT0}, s{sT0}, s{sRBH}
        s_add_u32 s{sT0}, s{sT0}, {OFo(L_)}
        v_add_u32 v{vG}, s{sT0}, v{vGATH}
        v_add_u32 v{vW}, {L_WOW}, v{vL16}'''))
        A.add(self.x_addrs(2 * L_, vS, 136))
        self.signal(self.o_stores, 4 * L_ + 0)
        A.add(pf.take(int(OPT.get(f'n_os{L_}', 3))))
        rd = [Ins(f'ds_read_b128 {v(RING + 4 * (i % NR), 4)}, v{vW} offset:{i * 1024}') for i in range(64)]
        A.add(rd[:D])
        self.wait_flags(4 * L_ + 0)
        self.stamp('owait')
        ld = [self.ld(v(BUF + 4 * ks, 4), vG, ks, 0, ' sc1') for ks in range(16)]
        NB0 = 6
        mf, pins = [], {-1: ld[:NB0]}
        for i in range(64):
            mf.append(mfma(v(ACC + 4 * (i & 3), 4), v(RING + 4 * (i % NR), 4), v(BUF + 4 * (i >> 2), 4)))
            p = []
            if i + D < 64:
                p.append(rd[i + D])
            if i % 2 == 1 and i + 1 < 64:
                p.append(WaitLG([rd[min(i + 2, 63)]]))
            if i % 4 == 0 and NB0 + i // 4 < 16:
                p.append(ld[NB0 + i // 4])
            pins[i] = p
        body, _ = sched(mf, pins, [])
        A.add(body)
        self.stamp('wopass')
        self.x_stores = self.finish_x(ACC, 2 * L_, vS, 44)
        self.stamp('woepi')
        A.add(pf.take(int(OPT.get(f'n_wo{L_}', 5))))

    def gelu_scalar(self, X, CS, B1, NMU, RS, W_, VC2, O):
        c1 = -2 * 0.7978845608028654 * 1.4426950408889634
        o = []
        R = range(4)
        o += [f'v_fmac_f32 v{X + r}, v{CS + r}, v{NMU}' for r in R]
        o += [f'v_fma_f32 v{X + r}, v{X + r}, v{RS}, v{B1 + r}' for r in R]
        o += [f'v_mul_f32 v{W_ + r}, v{X + r}, v{X + r}' for r in R]
        o += [f'v_fmaak_f32 v{W_ + r}, v{VC2}, v{W_ + r}, {f32(c1)}' for r in R]
        o += [f'v_mul_f32 v{W_ + r}, v{W_ + r}, v{X + r}' for r in R]
        o += [f'v_exp_f32 v{W_ + r}, v{W_ + r}' for r in R]
        o += [f'v_add_f32 v{W_ + r}, 1.0, v{W_ + r}' for r in R]
        o += [f'v_rcp_f32 v{W_ + r}, v{W_ + r}' for r in R]
        o += [f'v_mul_f32 v{X + r}, v{X + r}, v{W_ + r}' for r in R]
        o += [f'v_cvt_pk_bf16_f32 v{O + h}, v{X + 2 * h}, v{X + 2 * h + 1}' for h in range(2)]
        return [Ins(t) for t in o]

    def phase_up(self, L_):
        A, e, pf = self.A, self.e, self.pf
        ACC, RING, NR, D = 28, 76, 5, 4
        CS, B1, NMU, RS = 96, 108, 120, 124
        T = 128
        vX, vH0, vH1, VC2, vSA = 136, 137, 138, 139, 140
        A.add(I(f'''
        s_lshl_b32 s{sT0}, s{sH}, 5
        v_lshrrev_b32 v{vA0}, 8, v{vL16}
        v_lshl_add_u32 v{vA0}, v{vA0}, 3, s{sT0}'''))
        for t in range(3):
            e(f'buffer_load_dwordx2 {v(B1 + 4 * t + 2, 2)}, v{vA0}, {srd(SRD_B1)}, 0 offen{off(t * 1024)}')
        su, sl = self.stats_load(2 * L_, T)
        du, rounds = self.dma_x(2 * L_, vX)
        A.add(su + du)
        A.add(I(f'''
        s_lshl_b32 s{sT1}, s{sH}, 11
        s_add_u32 s{sT0}, s{sRBH}, s{sT1}
        s_add_u32 s{sT0}, s{sT0}, {HFo(L_)}
        v_add_u32 v{vH0}, s{sT0}, v{vL16}
        v_lshlrev_b32 v{vA0}, 3, v{vL16}
        v_and_b32 v{vA0}, 0x780, v{vA0}
        v_lshrrev_b32 v{vA1}, 8, v{vL16}
        v_lshl_add_u32 v{vA0}, v{vA1}, 16, v{vA0}
        v_mov_b32 v141, {OOB}
        s_cmp_lt_u32 s{sH}, 22
        s_cselect_b32 exec_hi, 0xffff, 0
        v_add_u32 v141, s{sT0}, v{vA0}
        s_mov_b64 exec, -1
        s_cselect_b32 s{sT0}, s{sT0}, {OOB}
        v_add_u32 v{vH1}, s{sT0}, v{vL16}
        s_mov_b32 s{sS2}, 65536
        s_mov_b32 s{sS3}, 131072
        v_mov_b32 v{VC2}, s{sC2}
        v_and_b32 v{vSA}, 0xf0, v{vL16}
        v_add_u32 v{vSA}, {L_STAT}, v{vSA}
        '''))
        cs = lambda t: [mfma(v(CS + 4 * t, 4), R4(XS[t][ks]), ONE4, '0' if ks == 0 else None) for ks in range(16)]
        bu = []
        for t in range(3):
            b = B1 + 4 * t
            bu += I(f'''v_lshlrev_b32 v{b}, 16, v{b + 2}
            v_and_b32 v{b + 1}, s{sMASKHI}, v{b + 2}
            v_lshlrev_b32 v{b + 2}, 16, v{b + 3}
            v_and_b32 v{b + 3}, s{sMASKHI}, v{b + 3}''')
        A.add(self.cs_addr(vA3))
        slots = [(CS + 4 * t, 2 + t) for t in range(3)]
        if L_ == 0:
            A.add(cs(0))
        else:
            A.add(self.cs_load(vA3, slots))
        self.signal(self.x_stores, 4 * L_ + 1)
        A.add(pf.rest())
        if L_ == 0:
            A.add(cs(2))
        self.wait_flags(4 * L_ + 1)
        self.stamp('x1wait')
        NR0 = int(OPT.get('nr0', 6))
        if L_ == 0:
            body, _ = sched(cs(1), {-1: rounds[0] + rounds[1] + rounds[2], 3: rounds[3], 7: rounds[4], 11: rounds[5]}, [])
            A.add(body)
            assert NR0 == 6
        else:
            for r in rounds[:NR0]:
                A.add(r)
        steps = [(tt, ks, [lambda b, tt=tt, ks=ks, t=t: mfma(v(ACC + 16 * t + 4 * tt, 4), R4(XS[t][ks]), b, '0' if ks == 0 else None)
                           for t in range(3)]) for tt in range(4) for ks in range(16)]
        sc = self.stats_combine(T, True)
        mf, pins, first = self.lds_pass(vL16, RING, NR, D, steps, self.x_gate(rounds, {24: [WaitLG([sc[-1]])]}))
        dm = paced(sl + [x for r in rounds[NR0:] for x in r] + (I(f'buffer_load_dword v141, v141, {WSR}, 0 offen sc1') if L_ and int(OPT.get('pt', 1)) else []), 0, 4)
        b16 = first[24 - D] + 1
        sreads = I(f'''
        ds_read_b128 {v(NMU, 4)}, v{vSA}
        ds_read_b128 {v(RS, 4)}, v{vSA} offset:256''')
        st = []

        def hstore(t, tp, O):
            o = I(f'''
            v_permlane16_swap_b32 v{O}, v{O + 2}
            v_permlane16_swap_b32 v{O + 1}, v{O + 3}''')
            so = ['0', f's{sS2}', f's{sS3}'][t]
            s_ = Ins(f'buffer_store_dwordx4 {v(O, 4)}, v{vH0 if t < 2 else vH1}, {WSR}, {so} offen{off(tp * 1024)}{SC0(L_ == 0 and t > 0)}')
            st.append(s_)
            return o + [s_]
        g0 = []
        for t in range(3):
            X = ACC + 16 * t
            g0 += at(b16 + 8, self.gelu_scalar(X, CS + 4 * t, B1 + 4 * t, NMU, RS, T + 4 * (t & 1), VC2, X))
        for t in range(3):
            X = ACC + 16 * t
            g0 += at(first[32] + 4, self.gelu_scalar(X + 4, CS + 4 * t, B1 + 4 * t, NMU + 1, RS + 1, T + 4 * (~t & 1), VC2, X + 2) + hstore(t, 0, X))
        f1 = at(0, bu) + at(28, sc) + at(b16, sreads) + g0
        if L_ == 0:
            pf.push(self.load_w2())
        n_up = int(OPT.get('n_up', 30))
        f2 = paced(pf.take(n_up), 54, 138.0 / n_up)
        body, left = sched(mf, pins, [dm, f2, f1])
        order = {id(x): k for k, x in enumerate(body)}
        assert order[id(sc[-1])] < order[id(mf[first[24 - D]])]
        print('up pass leftovers', [len(x) for x in left])
        A.add(body)
        self.stamp('uppass')
        if L_ == 0:
            pf.push(self.load_wqkv(0))
            pf.push(self.load_wqkv(1))
            pf.push(self.load_wqkv(2))
        seq = left[0] + left[1] + left[2]
        for t in range(3):
            X, W_ = ACC + 16 * t + 8, T
            o = []
            for i in range(4):
                sel, h = i >> 1, i & 1
                o.append(f'v_pk_fma_f32 {v(X + 2 * i, 2)}, {v(CS + 4 * t + 2 * h, 2)}, {v(NMU + 2, 2)}, {v(X + 2 * i, 2)} op_sel:[0,{sel},0] op_sel_hi:[1,{sel},1]')
            for i in range(4):
                sel, h = i >> 1, i & 1
                o.append(f'v_pk_fma_f32 {v(X + 2 * i, 2)}, {v(X + 2 * i, 2)}, {v(RS + 2, 2)}, {v(B1 + 4 * t + 2 * h, 2)} op_sel:[0,{sel},0] op_sel_hi:[1,{sel},1]')
            o += [f'v_pk_mul_f32 {v(W_ + 2 * i, 2)}, {v(X + 2 * i, 2)}, {v(X + 2 * i, 2)}' for i in range(4)]
            o += [f'v_pk_fma_f32 {v(W_ + 2 * i, 2)}, {v(W_ + 2 * i, 2)}, s[{sC2}:{sC2 + 1}], s[{sC2}:{sC2 + 1}] op_sel:[0,0,1] op_sel_hi:[1,0,1]' for i in range(4)]
            o += [f'v_pk_mul_f32 {v(W_ + 2 * i, 2)}, {v(W_ + 2 * i, 2)}, {v(X + 2 * i, 2)}' for i in range(4)]
            o += [f'v_exp_f32 v{W_ + i}, v{W_ + i}' for i in range(8)]
            o += [f'v_pk_add_f32 {v(W_ + 2 * i, 2)}, {v(W_ + 2 * i, 2)}, 1.0 op_sel_hi:[1,0]' for i in range(4)]
            o += [f'v_rcp_f32 v{W_ + i}, v{W_ + i}' for i in range(8)]
            o += [f'v_pk_mul_f32 {v(X + 2 * i, 2)}, {v(X + 2 * i, 2)}, {v(W_ + 2 * i, 2)}' for i in range(4)]
            o += [f'v_cvt_pk_bf16_f32 v{X + i}, v{X + 2 * i}, v{X + 2 * i + 1}' for i in range(4)]
            seq += [Ins(x) for x in o] + hstore(t, 1, X)
        A.add(spread(seq, pf.take(int(OPT.get('n_gelu', 8))), 0.0, 0.7))
        self.stamp('gelu')
        self.h_stores = st
        if L_ == 0:
            A.add(self.cs_save(vA3, slots))
        A.add(pf.take(int(OPT.get('n_h', 6))))

    def phase_dn(self, L_):
        A, e, pf = self.A, self.e, self.pf
        ACC, AD, B2 = 28, 92, 96
        bufs = [96 + 4 * i for i in range(11)]
        NB = len(bufs)
        vS, LA = 140, 141
        A.add(I(f'''
        v_lshrrev_b32 v{vA0}, 8, v{vL16}
        s_lshl_b32 s{sT0}, s{sJ}, 7
        v_lshl_add_u32 v{vA0}, v{vA0}, 4, s{sT0}
        buffer_load_dwordx4 {v(B2, 4)}, v{vA0}, {srd(SRD_B2)}, 0 offen
        buffer_load_dwordx4 {v(B2 + 4, 4)}, v{vA0}, {srd(SRD_B2)}, 0 offen offset:64
        s_mul_i32 s{sT1}, s{sW}, {11 * 4096}
        s_add_u32 s{sT0}, s{sRBH}, s{sT1}
        s_add_u32 s{sT0}, s{sT0}, {HFo(L_)}'''))
        for q in range(4):
            A.add(I(f'''
            s_xor_b32 s{sT1}, s{sW}, {q ^ 3}
            s_lshr_b32 s{sT2}, s{sT1}, 1
            s_lshl_b32 s{sT2}, s{sT2}, 10
            s_and_b32 s{sT1}, s{sT1}, 1
            s_lshl_b32 s{sT1}, s{sT1}, 8
            s_add_u32 s{sT1}, s{sT1}, s{sT2}
            s_add_u32 s{sT1}, s{sT1}, s{sT0}
            v_add_u32 v{AD + q}, s{sT1}, v{vGATH}'''))
        e(f'v_add_u32 v{vA3}, s{sW16K}, v{vL16}')
        for q in range(3):
            e(f'v_xor_b32 v{LA + q}, {(q ^ 3) << 14}, v{vA3}')
        A.add(self.x_addrs(1 if L_ == 0 else -1, vS, 132))
        self.signal(self.h_stores, 4 * L_ + 2)
        A.add(pf.take(int(OPT.get('n_hs', 3))))
        self.unpack_res(ACC + 48, B2)
        assert not any(x.kind == 'vmem' and x.dst[0][0] == 'a' and int(x.dst[0][1:]) < 176 for x in pf.q)
        self.wait_flags(4 * L_ + 2)
        self.stamp('hwait')
        seq = [(q, i) for q in range(4) for i in range(11)]
        ld = [self.ld(v(bufs[n % NB], 4), AD + q, i if i < 10 else f's{sLAST}', 0, ' sc1') for n, (q, i) in enumerate(seq)]
        NB0 = int(OPT.get('dn_nb0', 8))
        mf, pins = [], {-1: ld[:NB0]}
        for n, (q, i) in enumerate(seq):
            for T in range(4):
                mf.append(mfma(v(ACC + 16 * q + 4 * T, 4), a_(16 * i + 4 * T, 4), v(bufs[n % NB], 4), '0' if (i == 0 and q < 3) else None))
            if n + NB0 < len(seq):
                pins.setdefault(4 * n, []).append(ld[n + NB0])
            if n + 1 < len(seq):
                pins.setdefault(4 * n + 3, []).append(WaitVM([ld[n + 1]]))
        wr = []
        for q in range(3):
            for T in range(4):
                w_ = Ins(f'ds_write_b128 v{LA + q}, {v(ACC + 16 * q + 4 * T, 4)} offset:{L_ACT + q * 4096 + T * 1024}')
                wr.append(w_)
                pins.setdefault(44 * (q + 1) + 5 + 2 * T, []).append(w_)
        b = 132 + 17
        pins.setdefault(b, []).extend([WaitLG(None), Ins('s_barrier')])
        k = 0
        for T in range(4):
            for q in range(3):
                pins.setdefault(b + 1 + k, []).append(Ins(f'ds_read_b128 {v(ACC + 16 * q + 4 * T, 4)}, v{vA3} offset:{L_ACT + q * 4096 + T * 1024}'))
                k += 1
        adds = []
        for T in range(4):
            o = [Ins(f'v_add_f32 v{ACC + 4 * T + r}, v{ACC + 4 * T + r}, v{ACC + 16 + 4 * T + r}') for r in range(4)]
            o += [Ins(f'v_add_f32 v{ACC + 4 * T + r}, v{ACC + 4 * T + r}, v{ACC + 32 + 4 * T + r}') for r in range(4)]
            adds += at(b + 9 + 3 * T, o)
        f2 = paced(pf.take(int(OPT.get('n_dn', 6))), 4 * (44 - NB0) + 4, 4) if L_ == 0 else []
        body, left = sched(mf, pins, [adds, f2])
        print('dn leftovers', [len(x) for x in left])
        A.add(body + left[0] + left[1])
        self.stamp('dnpass')
        for i in range(8):
            e(f'v_pk_add_f32 {v(ACC + 48 + 2 * i, 2)}, {v(ACC + 48 + 2 * i, 2)}, {v(ACC + 2 * i, 2)}')
        if L_ == 0:
            st = self.finish_x(ACC + 48, 1, vS, 96)
            self.stamp('dnepi')
            A.add(pf.take(int(OPT.get('n_x2', 6))))
            self.x_stores = st
        else:
            self.finish_x(ACC + 48, -1, vS, 96)
            self.stamp('dnepi')

    def gen(self):
        A, e = self.A, self.e
        e('s_cmp_ge_u32 s2, 256')
        e('s_cbranch_scc1 M_done')
        if PAD:
            e('s_memrealtime s[42:43]')
        for r, o in ((SRD_X, 0), (SRD_WQ, 8), (SRD_WS, 88), (pW1, 40), (pWO, 24), (pW2, 56), (SRD_PHI, 16), (SRD_B1, 48), (SRD_B2, 64), (SRD_OUT, 72)):
            e(f's_load_dwordx2 s[{r}:{r + 1}], s[0:1], {o}')
        if PROFILE:
            e(f'v_mov_b32 v{vSTAMP}, 0')
        XR, vWN, vXN = 97, 142, 143
        self.vTR = vA3
        A.add(I(f'''
        s_getpc_b64 s[{sPC}:{sPC + 1}]
        v_lshrrev_b32 v{vA1}, 6, v0
        v_and_b32 v{vL16}, 63, v0
        s_lshr_b32 s{sT0}, s2, 3
        v_readfirstlane_b32 s{sW}, v{vA1}
        v_lshl_add_u32 v{vA0}, v{vL16}, 2, v{vA1}
        v_lshlrev_b32 v{vA0}, 5, v{vA0}
        v_add_lshl_u32 v{vA0}, v{vA0}, s{sT0}, 7
        v_lshlrev_b32 v{vL16}, 4, v{vL16}
        v_min_u32 v{vA0}, M_done-{KNAME}-128, v{vA0}
        s_mov_b64 exec, 15
        global_load_dword v214, v{vA0}, s[{sPC}:{sPC + 1}]
        s_mov_b64 exec, -1
        s_getreg_b32 s{sXCC}, hwreg(HW_REG_XCC_ID, 0, 3)
        s_and_b32 s{sX}, s2, 7
        s_lshr_b32 s{sT0}, s2, 3
        s_and_b32 s{sJ}, s{sT0}, 7
        s_lshr_b32 s{sT0}, s{sT0}, 3
        s_lshl_b32 s{sRB}, s{sX}, 2
        s_add_u32 s{sRB}, s{sRB}, s{sT0}
        s_lshl_b32 s{sRB64K}, s{sRB}, 16
        s_lshl_b32 s{sH}, s{sJ}, 2
        s_add_u32 s{sH}, s{sH}, s{sW}
        s_lshl_b32 s{sGW}, s2, 2
        s_add_u32 s{sGW}, s{sGW}, s{sW}
        s_lshl_b32 s{sW1K}, s{sW}, 10
        s_lshl_b32 s{sW16K}, s{sW}, 14
        s_add_u32 s{sT0}, s{sRB}, s{sJ}
        s_and_b32 s{sT0}, s{sT0}, {3 if int(OPT.get('rot', 0)) else 0}'''))
        for q in range(4):
            A.add(I(f'''
            s_add_u32 s{sT1}, s{sT0}, {q}
            s_and_b32 s{sT1}, s{sT1}, 3
            s_lshl_b32 s{sRQ + q}, s{sT1}, 8
            s_mul_i32 s{sRW + q}, s{sT1}, {128 * 3072}'''))
        for sr, n in ((SRD_WS, WS_USED), (SRD_X, 2048 * 1024), (SRD_OUT, 2048 * 1024), (SRD_PHI, 16384), (SRD_B1, 2752), (SRD_B2, 1024), (SRD_WQ, 512 * 3072)):
            e(f's_mov_b32 s{sr + 2}, {n}')
            e(f's_mov_b32 s{sr + 3}, 0x20000')
        e(f's_mov_b32 s{SRD_P + 3}, 0x20000')
        A.add(I(f'''
        v_lshrrev_b32 v{vA0}, 8, v{vL16}
        v_lshrrev_b32 v{vA1}, 1, v{vA0}
        v_xor_b32 v{vXN}, v{vA0}, v{vA1}
        v_and_b32 v{vXN}, 1, v{vXN}
        v_lshl_or_b32 v{vXN}, v{vXN}, 1, v{vA1}
        v_lshlrev_b32 v{vXN}, 4, v{vXN}
        v_and_b32 v{vA1}, 48, v{vL16}
        v_xor_b32 v{vXN}, v{vXN}, v{vA1}
        v_lshrrev_b32 v{vA1}, 6, v{vL16}
        v_lshl_add_u32 v{vXN}, v{vA1}, 10, v{vXN}
        s_add_u32 s{sT0}, s{sW16K}, s{sRB64K}
        v_add_u32 v{vXN}, s{sT0}, v{vXN}
        v_and_b32 v{vA0}, 1, v{vA0}
        s_and_b32 s{sT0}, s{sW}, 1
        s_lshl_b32 s{sT0}, s{sT0}, 1
        v_or_b32 v{vA0}, s{sT0}, v{vA0}
        v_lshlrev_b32 v{vA0}, 5, v{vA0}
        v_and_b32 v{vA1}, 0x70, v{vL16}
        v_xor_b32 v{vA0}, v{vA0}, v{vA1}
        v_lshrrev_b32 v{vA1}, 7, v{vL16}
        s_lshl_b32 s{sT0}, s{sW}, 3
        v_add_u32 v{vA1}, s{sT0}, v{vA1}
        v_mul_u32_u24 v{vA1}, 3072, v{vA1}
        s_lshl_b32 s{sT0}, s{sJ}, 7
        v_add3_u32 v{vWN}, v{vA1}, v{vA0}, s{sT0}'''))
        xd = lambda ks: I(f'''
        s_add_u32 m0, s{sW16K}, {L_ACT + ks * 1024 - (ks & 3) * 64}
        buffer_load_dwordx4 v{vXN}, {srd(SRD_X)}, s{sRQ + (ks >> 2)} offen{off((ks & 3) * 64)} lds''')

        def wd(c):
            o = []
            for n in range(4):
                if c < 8:
                    q, so = c >> 1, (64 * (c & 1) + 32 * (n & 1)) * 3072 + ((n >> 1) + 1) * 1024
                else:
                    q, so = c - 8, 32 * n * 3072
                o += I(f'''
                s_add_u32 m0, s{sW1K}, {L_WOW + (c & 3) * 16384 + n * 4096}
                s_add_u32 s{sCNT}, s{sRW + q}, {so}
                buffer_load_dwordx4 v{vWN}, {srd(SRD_WQ)}, s{sCNT} offen lds''')
            return o
        self.c_dma = [wd(c) for c in range(12)]
        xds = [xd(ks) for ks in range(16)]
        self.c_toks = [[self.c_dma[c][-1], xds[{4: 11, 5: 15}.get(c, 2 * c + 1)][-1]] for c in range(8)]
        self.q_toks = [self.c_dma[11][-1]]
        pp_, pi_, pf_, ps_ = self.prep(192)
        A.add(pp_)
        e('s_waitcnt lgkmcnt(0)')
        e(f's_load_dword s{sNONCE}, s[{SRD_WS}:{SRD_WS + 1}], 0')
        self.rstamp(62)
        self.stamp('start')
        self.prep_stores = [x for x in ps_ if x.kind == 'vmem']
        ch = lambda c: xds[2 * c] + xds[2 * c + 1] + self.c_dma[c]
        wu, wl, self.wphi_perm = self.load_wphi(224)
        cu, cst = self.clears(0, 234)
        self.prep_stores += cst
        X_ = int(OPT.get('xp', 0))
        if X_ >= 1:
            for x in self.prep_stores:
                x.text = x.text.replace(WSR, srd(SRD_B2))
        if X_ >= 2:
            for x in pi_:
                if x.kind == 'vmem':
                    x.text = x.text.replace(srd(SRD_P), srd(SRD_B2))
        A.add(pi_ + ch(0))
        mainA, self.A = self.A, Asm()
        A = self.A
        A.add(self.kv_addrs(0) + cu)
        rl = I(f'''
        buffer_load_dwordx4 {v(RES, 4)}, v223, {srd(SRD_X)}, 0 offen
        buffer_load_dwordx4 {v(RES + 4, 4)}, v223, {srd(SRD_X)}, 0 offen offset:64''')
        xs = lambda a, b: [x for ks in range(a, b) for x in xds[ks]]
        cd = self.c_dma
        fl = I(f'buffer_load_dword v222, v{vFLG}, {WSR}, 0 offen sc1')
        self.later = {0: ch(3), 1: cd[4] + xs(8, 12), 2: cd[5] + xs(12, 16), 3: cd[6] + wl, 4: cd[7],
                      5: cd[8], 6: cd[9] + rl + fl, 7: cd[10]}
        self.xlast = xds[15][-1]
        for k in range(1, 16):
            e(f's_mov_b32 s{sK0 + k}, {4096 * k}')
        c1 = -2 * 0.7978845608028654 * 1.4426950408889634
        A.add(I(f'''
        s_mov_b32 s{sONE}, 0x3f803f80
        s_mov_b32 s{sMASKHI}, 0xffff0000
        s_movk_i32 s{sT0}, 9
        s_cmp_lt_u32 s{sW}, 3
        s_addc_u32 s{sT0}, s{sT0}, 0
        s_lshl_b32 s{sLAST}, s{sT0}, 12
        s_mov_b32 s{sC2}, {f32(c1 * 0.044715)}
        s_mov_b32 s{sC2 + 1}, {f32(c1)}
        s_lshl_b64 s[{sJM}:{sJM + 1}], 1, s{sJ}
        s_mul_i32 s{sB_WQ}, s{sH}, 49152
        s_add_u32 s{sB_WQ}, s{sB_WQ}, {WS["WQKV"]}
        s_lshl_b32 s{sT0}, s{sH}, 14
        s_add_u32 s{sB_WO}, s{sT0}, {WS["WO"]}
        s_add_u32 s{sB_W1}, s{sT0}, {WS["W1"]}
        s_add_u32 s{sB_W1 + 1}, s{sT0}, {WS["W1"] + 32 * 16384}
        s_add_u32 s{sB_W1 + 2}, s{sT0}, {WS["W1"] + 64 * 16384}
        s_cmp_lt_u32 s{sH}, 22
        s_cselect_b32 s{sB_W1 + 2}, s{sB_W1 + 2}, {OOB}
        s_mul_i32 s{sT0}, s{sJ}, 43
        s_mul_i32 s{sT1}, s{sW}, 11
        s_add_u32 s{sT0}, s{sT0}, s{sT1}
        s_lshl_b32 s{sT0}, s{sT0}, 12
        s_add_u32 s{sB_W2}, s{sT0}, {WS["W2"]}
        s_cmp_lt_u32 s{sW}, 3
        s_cselect_b32 s{sB_W2x}, s{sB_W2}, {OOB}'''))
        self.masks = []
        for gi in range(4):
            m = 0x000f000f << (4 * gi)
            self.masks += I(f'''s_mov_b32 s{sM + 2 * gi}, 0x{m:08x}
            s_mov_b32 s{sM + 2 * gi + 1}, 0x{m:08x}''')
        e(f's_mul_i32 s{sRBH}, s{sRB}, {RBH}')
        A.add(wu)
        A.add(self.rowmajor_off(223, vA1))
        A.add(I(f'''
        v_lshrrev_b32 v{vA0}, 8, v{vL16}
        v_and_b32 v{vA1}, 1, v{vA0}
        v_lshrrev_b32 v{vPF}, 1, v{vA0}
        v_and_b32 v{vGATH}, 0xf0, v{vL16}
        v_lshl_add_u32 v{vGATH}, v{vA1}, 9, v{vGATH}
        v_lshl_add_u32 v{vGATH}, v{vPF}, 11, v{vGATH}
        v_bfe_u32 v{vPF}, v{vL16}, 7, 1
        v_lshl_or_b32 v{vA1}, v{vA1}, 1, v{vPF}
        v_xor_b32 v{vA1}, s{sW}, v{vA1}
        v_lshlrev_b32 v{vA1}, 5, v{vA1}
        v_bfe_u32 v{vPF}, v{vL16}, 6, 2
        v_lshl_add_u32 v{vPF}, v{vA0}, 3, v{vPF}
        v_lshl_add_u32 v{vA1}, v{vPF}, 7, v{vA1}
        v_bfe_u32 v{vPF}, v{vL16}, 4, 2
        v_lshl_add_u32 v{vA1}, v{vPF}, 3, v{vA1}
        v_add_u32 v{self.vTR}, {L_WOW}, v{vA1}
        v_bfe_u32 v{vA1}, v{vL16}, 6, 2
        v_lshrrev_b32 v{vPF}, 1, v{vA1}
        v_xor_b32 v{vA1}, v{vA1}, v{vPF}
        v_and_b32 v{vA1}, 1, v{vA1}
        v_lshl_or_b32 v{vA1}, v{vA1}, 1, v{vPF}
        v_xor_b32 v{vA1}, v{vA1}, v{vA0}
        v_lshlrev_b32 v{vA1}, 4, v{vA1}
        v_and_b32 v{vPF}, 0xf0, v{vL16}
        v_lshl_add_u32 v{XR}, v{vPF}, 2, v{vA1}
        v_bfe_u32 v{vFLG}, v{vL16}, 4, 3
        s_lshl_b32 s{sT0}, s{sRB}, 7
        s_add_u32 s{sT0}, s{sT0}, {WS['FLAG']}
        v_lshl_add_u32 v{vFLG}, v{vFLG}, 2, s{sT0}
        s_lshr_b32 s{sROT4}, s{sRQ}, 6
        s_lshr_b32 s{sT0}, s{sRB}, 2
        s_lshr_b32 s{sT1}, s{sROT4}, 1
        s_sub_u32 s{sPC_}, s{sT0}, s{sT1}
        s_and_b32 s{sPC_}, s{sPC_}, 7
        s_and_b32 s{sT1}, s{sRB}, 3
        s_lshl_b32 s{sT1}, s{sT1}, 12
        v_add_u32 v220, s{sT1}, v{self.vTR}
        s_lshl_b32 s{sT0}, s{sT0}, 11
        s_and_b32 s{sT1}, s{sRB}, 1
        s_lshl_b32 s{sT1}, s{sT1}, 10
        s_add_u32 s{sT0}, s{sT0}, s{sT1}
        s_and_b32 s{sT1}, s{sRB}, 2
        s_lshl_b32 s{sT1}, s{sT1}, 13
        s_add_u32 s{sT0}, s{sT0}, s{sT1}
        s_add_u32 s{sT0}, s{sT0}, s{sB_WQ}
        v_add_u32 v221, s{sT0}, v{vL16}
        s_lshl_b32 s{sT0}, s{sX}, 13
        s_add_u32 s{sT0}, s{sT0}, {WS['PFLAG']}
        s_cmp_eq_u32 s{sW}, 0
        s_cselect_b32 s{sT0}, s{sT0}, {OOB}
        v_lshl_add_u32 v{vPF}, v{vL16}, 3, s{sT0}
        s_mov_b32 s{sS3}, 0x05040100
        s_mov_b32 s{sS4}, 0x07060302'''))
        for i in range(4):
            e(f'v_mov_b32 v{ONES + i}, s{sONE}')
        setup, self.A = A.items, mainA
        A = self.A
        groups = [xds[2], xds[3]] + [self.c_dma[1][i:i + 3] for i in range(0, 12, 3)] + [xds[4], xds[5]]
        ok, live_exec = [], False
        for k, it in enumerate(setup):
            scc_live = False
            for nx in setup[k:]:
                if nx.op.startswith('s_cselect') or nx.op.startswith('s_addc'):
                    scc_live = True
                    break
                if nx.kind == 'salu' and not nx.op.startswith('s_mov') and not nx.op.startswith('s_mul'):
                    break
            ok.append(not scc_live and not live_exec)
            if 'exec' in it.dst:
                live_exec = '-1' not in it.text
        g = 0
        for k, it in enumerate(setup):
            if g < len(groups) and ok[k] and k >= len(setup) * g / len(groups):
                A.add(groups[g])
                g += 1
            A.add([it])
        assert g == len(groups)
        e('s_waitcnt lgkmcnt(0)')
        A.add(I(f'''
        s_lshr_b32 s{sNONCE}, s{sNONCE}, 3
        s_mul_i32 s{sNONCE}, s{sNONCE}, 1664525
        s_add_u32 s{sNONCE}, s{sNONCE}, 1013904223
        s_lshl_b32 s{sNONCE}, s{sNONCE}, 3'''))
        self.stamp('setup')
        A.add(pf_ + self.c_dma[2] + ps_ + cst)
        self.stamp('issued')
        for L_ in range(2):
            self.phase_qkv(L_)
            self.phase_wo(L_)
            self.phase_up(L_)
            self.phase_dn(L_)
        assert not self.pf.q
        if PROFILE:
            e('s_waitcnt vmcnt(0)')
            self.stamp('end')
            self.rstamp(63)
            A.add(I(f'''
            s_lshl_b32 s{sT0}, s{sGW}, 8
            s_add_u32 s{sT0}, s{sT0}, {WS["PROF"]}
            v_lshrrev_b32 v{vA0}, 2, v{vL16}
            buffer_store_dword v{vSTAMP}, v{vA0}, {WSR}, s{sT0} offen'''))
        if PAD:
            A.raw(f'''
            s_waitcnt vmcnt(0) lgkmcnt(0)
            Lpad:
            s_memrealtime s[84:85]
            s_waitcnt lgkmcnt(0)
            s_sub_u32 s84, s84, s42
            s_cmp_lt_u32 s84, {PAD}
            s_cbranch_scc1 Lpad''')
        e('M_done:')
        e('s_endpgm')
        return A


def main():
    M = Main()
    body, st = M.gen().finalize()
    txt = ['; hedgehog linear attention + channel MLP, two interleaved layer pairs (generated by tools/gen3.py)',
           f'; @launch grid=(256,1,1) block=(256,1,1) lds={LDS_BYTES}',
           '.amdgcn_target "amdgcn-amd-amdhsa--gfx950"', '.text',
           f'.globl {KNAME}', '.p2align 8', f'.type {KNAME},@function', f'{KNAME}:']
    txt += [('' if l.endswith(':') else '    ') + l for l in body if l.strip()]
    txt += ['.section .rodata,"a"', '.p2align 6', f'''.amdhsa_kernel {KNAME}
  .amdhsa_next_free_vgpr 512
  .amdhsa_next_free_sgpr 102
  .amdhsa_accum_offset 256
  .amdhsa_group_segment_fixed_size 0
  .amdhsa_kernarg_size 96
  .amdhsa_user_sgpr_count 2
  .amdhsa_user_sgpr_kernarg_segment_ptr 1
  .amdhsa_system_sgpr_workgroup_id_x 1
.end_amdhsa_kernel''']
    open(OUTFILE, 'w').write('\n'.join(txt) + '\n')
    json.dump({'WS': WS, 'stamps': M.names, 'ver': 3}, open(OUTFILE + '.json', 'w'))
    print('main', st, 'ws', WS_USED)


main()
```

```python
import sys, struct, json
sys.path.insert(0, 'tools')
from asmfw import Asm, Ins, WaitVM, WaitLG, sched, spread, cost

NAME = 'interleave_layers__linear_kernel_hedgehog__mixer_channel_mlp__prompt'
KNAME = NAME + '_kernel'
PROFILE = '--profile' in sys.argv
OPT = {}
for a in sys.argv[1:]:
    if a.startswith('--') and '=' in a:
        k, val = a[2:].split('=')
        OPT[k] = val
OUTFILE = [a for a in sys.argv[1:] if not a.startswith('--')]
OUTFILE = OUTFILE[0] if OUTFILE else f'cdna_kernels/{NAME}.s'
FORCE_SLOW = int(OPT.get('slow', 0))
NT = ' nt' if int(OPT.get('nt', 0)) else ''
LATEST = int(OPT.get('latest', 1))
SC0 = lambda first: ' sc1' if (first or int(OPT.get('allsc', 0))) else ''
PAD = int(OPT.get('pad', 0))


def f32(x):
    return '0x%08x' % struct.unpack('<I', struct.pack('<f', x))[0]


KB = 1024
WS = {}
_off = 0
def alloc(name, size):
    global _off
    WS[name] = _off
    _off += (size + 4095) // 4096 * 4096
alloc('EPOCH', 4096)
alloc('PFLAG', 65536)
alloc('FLAG', 32 * 128)
alloc('WQKV', 32 * 3 * 16 * KB)
alloc('W1', 88 * 16 * KB)
alloc('WO', 8 * 16 * 4 * KB)
alloc('W2', 8 * 43 * 4 * KB)
alloc('XF', 3 * 32 * 64 * KB)
alloc('ST', 3 * 32 * 4 * KB)
alloc('OF', 2 * 32 * 86 * 2 * KB)
alloc('HF', 2 * 32 * 86 * 2 * KB)
alloc('KVP', 2 * 32 * 32 * KB)
alloc('ZP', 2 * 32 * 2 * KB)
alloc('KVF', 2 * 8 * 32 * KB)
alloc('PROF', 1024 * 256)
WS_USED = _off
OOB = 0x70000000
NORE = int(OPT.get('nore', 0))
RBH = 86 * 2048
XFo = lambda inst: WS['XF'] + NORE * inst * 2048 * KB
STo = lambda inst: WS['ST'] + NORE * inst * 128 * KB
HFo = lambda L: WS['HF'] + NORE * L * 32 * RBH
OFo = lambda L: (WS['OF'] + L * 32 * RBH) if NORE else WS['HF']
TIMEOUT = 0x80000

L_ACT, L_WOW, L_TS, L_STAT = 0, 64 * KB, 128 * KB, 144 * KB
L_CS = 145 * KB
LDS_BYTES = 148 * KB


def v(i, n=1):
    return f'v{i}' if n == 1 else f'v[{i}:{i + n - 1}]'
def a_(i, n=1):
    return f'a{i}' if n == 1 else f'a[{i}:{i + n - 1}]'


SRD_WS, SRD_X, SRD_OUT, SRD_PHI, SRD_B1, SRD_B2, SRD_WQ, SRD_P = 4, 8, 12, 16, 20, 24, 76, 80
def srd(n):
    return f's[{n}:{n + 3}]'
WSR = srd(SRD_WS)
sW, sJ, sRB, sH, sX, sGW = 28, 29, 30, 31, 32, 33
sT0, sT1, sT2, sT3 = 34, 35, 36, 37
sCNT, sLAST, sONE, sMASKHI, sTM, sRB64K, sNONCE, sFAST, sW1K = 38, 39, 40, 41, 42, 44, 45, 46, 47
sK0 = 47
sW16K = 63
sM, sJM, sC2 = 64, 72, 74
pWO, pW1, pW2, sPC = 48, 50, 52, 54
sB_WQ, sB_W1, sB_W2, sB_W2x, sB_WO = 92, 93, 96, 97, 98
sS0, sS1, sS2 = 99, 100, 101
sS3, sS4 = 84, 85
sXCC = 3
sROT4, sPC_ = 0, 1
sPD = 87
sRBH = 86
sRQ, sRW = 64, 88

vL16, vGATH, vFLG, vSTAMP = 1, 2, 3, 4
vA0, vA1, vPF, vA3 = 5, 6, 7, 0
RES, WB, ONES = 8, 16, 24
XS0 = [('a', 176 + 4 * k) for k in range(16)]
XS1 = [('v', 144 + 4 * k) for k in range(12)] + [('a', 240 + 4 * k) for k in range(4)]
XS2 = [('v', 192 + 4 * k) for k in range(16)]
XS = [XS0, XS1, XS2]
SPARSE = 144
ONE4 = v(ONES, 4)


def R4(t):
    return f'{t[0]}[{t[1]}:{t[1] + 3}]'
def R2(t, h):
    return f'{t[0]}[{t[1] + 2 * h}:{t[1] + 2 * h + 1}]'
def K(k):
    return '0' if k == 0 else f's{sK0 + k}'
def mfma(d, a, b, c=None):
    c = d if c is None else c
    return Ins(f'v_mfma_f32_16x16x32_bf16 {d}, {a}, {b}, {c}')
def I(txt):
    return [Ins(l.strip()) for l in txt.strip().split('\n') if l.strip()]
def off(n):
    return f' offset:{n}' if n else ''
def at(idx, items):
    return [(idx, x) for x in items]


class PF:
    def __init__(self):
        self.q = []
    def push(self, items):
        self.q.extend(items)
    def take(self, n):
        out = []
        while self.q and n > 0:
            it = self.q.pop(0)
            out.append(it)
            if it.kind == 'vmem':
                n -= 1
        return out
    def rest(self):
        return self.take(10 ** 6)


def paced(items, first, step):
    out, idx = [], first
    for it in items:
        out.append((int(idx), it))
        if it.kind == 'vmem':
            idx += step
    return out


class Main:
    def __init__(self):
        self.A = Asm()
        self.nstamp = 0
        self.lbl = 0
        self.names = []
        self.pf = PF()

    def e(self, t):
        return self.A.e(t)

    def stamp(self, name):
        self.seen = getattr(self, 'seen', {})
        self.seen[name] = self.seen.get(name, -1) + 1
        if PAD and OPT.get('padat') == f'{name}{self.seen[name]}':
            self.e('s_memrealtime s[42:43]')
            self.e('s_waitcnt lgkmcnt(0)')
        if not PROFILE:
            return
        self.names.append(name)
        self.e(f's_memtime s[{sTM}:{sTM + 1}]')
        self.e('s_waitcnt lgkmcnt(0)')
        self.e(f'v_writelane_b32 v{vSTAMP}, s{sTM}, {self.nstamp}')
        self.nstamp += 1

    def rstamp(self, idx):
        if not PROFILE:
            return
        self.e(f's_memrealtime s[{sTM}:{sTM + 1}]')
        self.e('s_waitcnt lgkmcnt(0)')
        self.e(f'v_writelane_b32 v{vSTAMP}, s{sTM}, {idx}')

    def label(self):
        self.lbl += 1
        return f'L{self.lbl}'

    def signal(self, stores, seam):
        A = self.A
        L, Ls = self.label(), self.label()
        self.e(f'v_add_u32 v{vA1}, s{sNONCE}, {seam}')
        self.e(f's_cmp_lg_u32 s{sW}, 0')
        A.wait_vm(stores)
        A.wait_lg()
        self.e('s_barrier')
        self.e(f's_cbranch_scc1 {L}')
        A.raw(f'''
        s_cmp_eq_u32 s{sFAST}, 0
        s_mov_b64 exec, s[{sJM}:{sJM + 1}]
        s_cbranch_scc1 {Ls}
        buffer_store_dword v{vA1}, v{vFLG}, {WSR}, 0 offen
        s_mov_b64 exec, -1
        s_branch {L}
        {Ls}:
        buffer_wbl2 sc1
        s_waitcnt vmcnt(0)
        buffer_store_dword v{vA1}, v{vFLG}, {WSR}, 0 offen sc1
        s_mov_b64 exec, -1
        {L}:
        ''')

    def wait_flags(self, seam):
        A = self.A
        L, Lp = self.label(), self.label()
        self.e(f's_cmp_lg_u32 s{sW}, 0')
        self.e(f's_cbranch_scc1 {L}')
        A.raw(f'''
        s_mov_b64 exec, 0xff
        s_mov_b32 s{sCNT}, 0
        s_add_u32 s{sT0}, s{sNONCE}, {seam}
        {Lp}:
        buffer_load_dword v{vA1}, v{vFLG}, {WSR}, 0 offen sc1
        s_add_u32 s{sCNT}, s{sCNT}, 1
        s_cmp_gt_u32 s{sCNT}, {TIMEOUT}
        s_cbranch_scc1 {L}x
        s_waitcnt vmcnt(0)
        v_subrev_u32 v{vA1}, s{sT0}, v{vA1}
        v_cmp_lt_u32 vcc, {7 - seam}, v{vA1}
        s_cbranch_vccnz {Lp}
        {L}x:
        s_mov_b64 exec, -1
        s_cmp_lg_u32 s{sFAST}, 0
        s_cbranch_scc1 {L}
        buffer_inv sc1
        s_waitcnt vmcnt(0)
        {L}:
        ''')
        self.e('s_barrier')

    def retry(self, loads, check):
        A = self.A
        Lc, Lo = self.label(), self.label()
        A.wait_vm(loads)
        self.e(f's_mov_b32 s{sCNT}, 0')
        self.e(f'{Lc}:')
        for t in check:
            self.e(t)
        self.e(f's_cbranch_vccz {Lo}')
        A.raw('\n'.join(l.text for l in loads))
        A.raw(f'''
        s_add_u32 s{sCNT}, s{sCNT}, 1
        s_cmp_lt_u32 s{sCNT}, {TIMEOUT}
        s_waitcnt vmcnt(0)
        s_cbranch_scc1 {Lc}
        {Lo}:
        ''')

    @staticmethod
    def sentinel_check(regs, t):
        out = [f'v_max3_u32 v{t}, v{regs[0]}, v{regs[1]}, v{regs[2]}']
        r = regs[3:]
        while len(r) >= 2:
            out.append(f'v_max3_u32 v{t}, v{t}, v{r[0]}, v{r[1]}')
            r = r[2:]
        if r:
            out.append(f'v_max_u32 v{t}, v{t}, v{r[0]}')
        out.append(f'v_cmp_eq_u32 vcc, -1, v{t}')
        return out

    def ld(self, dst, voff, k, imm, sc=''):
        so = k if isinstance(k, str) else K(k)
        return Ins(f'buffer_load_dwordx4 {dst}, v{voff}, {WSR}, {so} offen{off(imm)}{sc}')

    def load_wqkv(self, part):
        out = I(f'v_add_u32 v{vPF}, s{sB_WQ}, v{vL16}')
        return out + [self.ld(R4(XS[part][ks]), vPF, 4 * part + (ks >> 2), (ks & 3) * 1024, NT) for ks in range(16)]

    def load_w1(self, t, order=None):
        out = I(f'v_add_u32 v{vPF}, s{sB_W1 + t}, v{vL16}')
        return out + [self.ld(R4(XS[t][ks]), vPF, ks >> 2, (ks & 3) * 1024) for ks in (order or range(16))]

    def load_w2(self):
        out = I(f'v_add_u32 v{vPF}, s{sB_W2}, v{vL16}')
        for i in range(11):
            if i == 10:
                out += I(f'v_add_u32 v{vPF}, s{sB_W2x}, v{vL16}')
            out += [self.ld(a_(16 * i + 4 * T, 4), vPF, i, T * 1024, NT) for T in range(4)]
        return out

    def load_wo(self):
        out = I(f'v_add_u32 v{vPF}, s{sB_WO}, v{vL16}')
        self.wo_toks = []
        for q in range(4):
            out += I(f's_add_u32 m0, s{sW16K}, {L_WOW + q * 4096}')
            for n in range(4):
                i = Ins(f'buffer_load_dwordx4 v{vPF}, {WSR}, {K(q)} offen{off(n * 1024)}{NT} lds')
                out.append(i)
                self.wo_toks.append(i)
        return out

    def load_wphi(self, T):
        o = I(f'''
        v_lshrrev_b32 v{T + 8}, 8, v{vL16}
        v_lshlrev_b32 v{T + 8}, 7, v{T + 8}
        v_bfe_u32 v{vA1}, v{vL16}, 4, 2
        v_lshl_add_u32 v{T + 8}, v{vA1}, 3, v{T + 8}
        s_lshl_b32 s{sT0}, s{sH}, 9
        v_add_u32 v{T + 8}, s{sT0}, v{T + 8}''')
        l = []
        for r in range(4):
            l += I(f'buffer_load_dwordx2 {v(T + 2 * r, 2)}, v{T + 8}, {srd(SRD_PHI)}, 0 offen{off(r * 32)}')
        p = []
        for u in range(4):
            for h in range(2):
                p += I(f'v_perm_b32 v{WB + 2 * u + h}, v{T + 2 * (2 * h + 1) + (u >> 1)}, v{T + 2 * (2 * h) + (u >> 1)}, s{sS4 if u & 1 else sS3}')
        return o, l, p

    def cs_addr(self, va):
        return I(f'''
        v_lshrrev_b32 v{va}, 8, v{vL16}
        v_lshlrev_b32 v{va}, 4, v{va}
        s_lshl_b32 s{sT0}, s{sW}, 9
        s_add_u32 s{sT0}, s{sT0}, {L_CS}
        v_add_u32 v{va}, s{sT0}, v{va}''')

    def cs_save(self, va, regs):
        o = I('''s_mov_b32 exec_lo, 0x00010001
        s_mov_b32 exec_hi, 0x00010001''')
        o += [Ins(f'ds_write_b128 v{va}, {v(r, 4)} offset:{sl * 64}') for r, sl in regs]
        return o + I('s_mov_b64 exec, -1')

    def cs_load(self, va, regs):
        return [Ins(f'ds_read_b128 {v(r, 4)}, v{va} offset:{sl * 64}') for r, sl in regs]

    def stats_math(self, S, Q, T, double_ln):
        o = I(f'''
        v_mul_f32 v{S}, {f32(-1.0 / 512)}, v{S}
        v_mul_f32 v{Q}, {f32(1.0 / 512)}, v{Q}
        v_fma_f32 v{Q}, -v{S}, v{S}, v{Q}
        v_max_f32 v{Q}, 0, v{Q}
        v_add_f32 v{T}, {f32(1e-5)}, v{Q}
        v_rsq_f32 v{T}, v{T}''')
        if double_ln:
            o += I(f'''
            v_mul_f32 v{Q}, v{T}, v{Q}
            v_fmaak_f32 v{Q}, v{Q}, v{T}, {f32(1e-5)}
            v_rsq_f32 v{Q}, v{Q}
            v_mul_f32 v{T}, v{T}, v{Q}''')
        return o

    def stats_load(self, inst, T):
        setup = I(f'''
        s_lshl_b32 s{sS4}, s{sRB}, 12
        s_lshl_b32 s{sT1}, s{sW}, 7
        s_add_u32 s{sS4}, s{sS4}, s{sT1}
        s_add_u32 s{sS4}, s{sS4}, {STo(inst)}
        v_bfe_u32 v{T + 4}, v{vL16}, 4, 4
        v_lshrrev_b32 v{T + 5}, 8, v{vL16}
        v_lshlrev_b32 v{T + 6}, 9, v{T + 5}
        v_lshl_add_u32 v{T + 6}, v{T + 4}, 3, v{T + 6}
        s_lshl_b32 s{sT0}, s{sW}, 2
        s_lshl_b32 s{sT1}, s{sW}, 6
        v_lshl_add_u32 v{T + 7}, v{T + 4}, 4, s{sT0}
        v_lshl_add_u32 v{T + 4}, v{T + 4}, 2, s{sT1}
        v_cmp_gt_u32 vcc, 2, v{T + 5}
        v_cndmask_b32 v{T + 7}, v{T + 4}, v{T + 7}, vcc
        v_lshl_add_u32 v{T + 7}, v{T + 5}, 8, v{T + 7}
        v_add_u32 v{T + 7}, {L_STAT}, v{T + 7}''')
        loads = I(f'''
        buffer_load_dwordx2 {v(T, 2)}, v{T + 6}, {WSR}, s{sS4} offen sc1
        buffer_load_dwordx2 {v(T + 2, 2)}, v{T + 6}, {WSR}, s{sS4} offen offset:2048 sc1''')
        return setup, loads

    def stats_combine(self, T, double_ln):
        o = I(f'''
        v_add_f32 v{T}, v{T}, v{T + 2}
        v_add_f32 v{T + 1}, v{T + 1}, v{T + 3}''')
        for sw in ('v_permlane32_swap_b32', 'v_permlane16_swap_b32'):
            o += I(f'''
            v_mov_b32 v{T + 2}, v{T}
            v_mov_b32 v{T + 3}, v{T + 1}
            {sw} v{T}, v{T + 2}
            {sw} v{T + 1}, v{T + 3}
            v_add_f32 v{T}, v{T}, v{T + 2}
            v_add_f32 v{T + 1}, v{T + 1}, v{T + 3}''')
        o += self.stats_math(T, T + 1, T + 2, double_ln)
        o += I(f'''
        s_mov_b32 vcc_lo, 0x0000ffff
        s_mov_b32 vcc_hi, 0x0000ffff
        v_cndmask_b32 v{T + 2}, v{T + 2}, v{T}, vcc
        ds_write_b32 v{T + 7}, v{T + 2}''')
        return o

    def dma_x(self, inst, va):
        setup = I(f'''
        s_add_u32 s{sT0}, s{sW1K}, s{sRB64K}
        s_add_u32 s{sT0}, s{sT0}, {XFo(inst)}
        v_add_u32 v{va}, s{sT0}, v{vL16}''')
        rounds = []
        for n in range(16):
            rounds.append(I(f'''
            s_add_u32 m0, s{sW1K}, {L_ACT + n * 4096}
            buffer_load_dwordx4 v{va}, {WSR}, {K(n)} offen sc1 lds'''))
        return setup, rounds

    def lds_pass(self, vaddr, RING, NR, D, steps, gate, wait_every=1):
        mf, pins, first = [], {}, []
        reads = [Ins(f'ds_read_b128 {v(RING + 4 * (i % NR), 4)}, v{vaddr} offset:{L_ACT + (tt * 16 + ks) * 1024}')
                 for i, (tt, ks, _) in enumerate(steps)]
        pins[-1] = []
        for i in range(D):
            pins[-1] += gate(i) + [reads[i]]
        for i, (tt, ks, fns) in enumerate(steps):
            b = v(RING + 4 * (i % NR), 4)
            first.append(len(mf))
            for n, fn in enumerate(fns):
                mf.append(fn(b))
                idx = len(mf) - 1
                if n == 0 and i + D < len(steps):
                    pins.setdefault(idx, []).extend(gate(i + D) + [reads[i + D]])
                if n == len(fns) - 1 and i + 1 < len(steps) and (i + 1) % wait_every == 0:
                    pins.setdefault(idx, []).append(WaitLG([reads[min(i + wait_every, len(steps) - 1)]]))
        return mf, pins, first

    def x_gate(self, rounds, extra=None):
        g = {0: 0, 4: 1, 8: 3, 16: 5, 24: 7, 32: 11, 48: 15}
        extra = extra or {}
        def gate(i):
            if i in g:
                return [WaitVM([rounds[g[i]][-1]])] + extra.get(i, []) + [Ins('s_barrier')]
            return []
        return gate

    def phi_mfma(self, ACC, P):
        return [mfma(v(P + 4 * u, 4), v(SPARSE + 8 * u + 4 * m, 4), v(ACC + 8 * m, 4), '0' if m == 0 else None)
                for m in range(2) for u in range(4)]

    def kfix(self, ACC, CS, NMU, tt):
        o = [Ins(f'v_fmac_f32 v{ACC + 4 * tt + r}, v{CS + r}, v{NMU + tt}') for r in range(4)]
        d = ACC + 8 * (tt >> 1) + 2 * (tt & 1)
        o += [Ins(f'v_cvt_pk_bf16_f32 v{d + h}, v{ACC + 4 * tt + 2 * h}, v{ACC + 4 * tt + 2 * h + 1}') for h in range(2)]
        return o

    def vfix(self, ACV, CSV, NB, RB_, tt):
        o = [Ins(f'v_fmac_f32 v{ACV + 4 * tt + r}, v{NB + r}, v{CSV}') for r in range(4)]
        o += [Ins(f'v_mul_f32 v{ACV + 4 * tt + r}, v{ACV + 4 * tt + r}, v{RB_ + r}') for r in range(4)]
        d = ACV + 8 * (tt >> 1) + 2 * (tt & 1)
        o += [Ins(f'v_cvt_pk_bf16_f32 v{d + h}, v{ACV + 4 * tt + 2 * h}, v{ACV + 4 * tt + 2 * h + 1}') for h in range(2)]
        return o

    def softmax(self, CB0, P, E, T, dstmap):
        o = []
        e = lambda t: o.append(Ins(t))
        MX, MN, CB, CN = T, T + 1, T + 2, T + 4
        e(f'v_max3_f32 v{MX}, v{P}, v{P + 1}, v{P + 2}')
        e(f'v_min3_f32 v{MN}, v{P}, v{P + 1}, v{P + 2}')
        for i in range(3, 15, 2):
            e(f'v_max3_f32 v{MX}, v{MX}, v{P + i}, v{P + i + 1}')
            e(f'v_min3_f32 v{MN}, v{MN}, v{P + i}, v{P + i + 1}')
        e(f'v_max_f32 v{MX}, v{MX}, v{P + 15}')
        e(f'v_min_f32 v{MN}, v{MN}, v{P + 15}')
        e(f'v_pk_mul_f32 {v(MX, 2)}, {v(MX, 2)}, {v(CB0, 2)} op_sel_hi:[1,0]')
        for i in range(0, 16, 2):
            e(f'v_pk_fma_f32 {v(E + i, 2)}, {v(P + i, 2)}, {v(CB0, 2)}, {v(MX, 2)} op_sel_hi:[1,0,0] neg_lo:[0,0,1] neg_hi:[0,0,1]')
        for i in range(0, 16, 2):
            e(f'v_pk_fma_f32 {v(P + i, 2)}, {v(P + i, 2)}, {v(CB0, 2)}, {v(MX, 2)} op_sel:[0,0,1] op_sel_hi:[1,0,1] neg_lo:[1,0,0] neg_hi:[1,0,0]')
        for i in range(16):
            e(f'v_exp_f32 v{E + i}, v{E + i}')
        for i in range(16):
            e(f'v_exp_f32 v{P + i}, v{P + i}')
        e(f'v_pk_add_f32 {v(CB, 2)}, {v(E, 2)}, {v(E + 2, 2)}')
        e(f'v_pk_add_f32 {v(CN, 2)}, {v(P, 2)}, {v(P + 2, 2)}')
        for i in range(4, 16, 2):
            e(f'v_pk_add_f32 {v(CB, 2)}, {v(CB, 2)}, {v(E + i, 2)}')
            e(f'v_pk_add_f32 {v(CN, 2)}, {v(CN, 2)}, {v(P + i, 2)}')
        e(f'v_add_f32 v{CB}, v{CB}, v{CB + 1}')
        e(f'v_add_f32 v{CN}, v{CN}, v{CN + 1}')
        e(f'v_rcp_f32 v{CB}, v{CB}')
        e(f'v_rcp_f32 v{CN}, v{CN}')
        for i in range(0, 16, 2):
            e(f'v_pk_mul_f32 {v(E + i, 2)}, {v(E + i, 2)}, {v(CB, 2)} op_sel_hi:[1,0]')
        for i in range(8):
            e(f'v_cvt_pk_bf16_f32 v{dstmap(0, i)}, v{E + 2 * i}, v{E + 2 * i + 1}')
        mid = len(o)
        for i in range(0, 16, 2):
            e(f'v_pk_mul_f32 {v(P + i, 2)}, {v(P + i, 2)}, {v(CN, 2)} op_sel_hi:[1,0]')
        for i in range(8):
            e(f'v_cvt_pk_bf16_f32 v{dstmap(1, i)}, v{P + 2 * i}, v{P + 2 * i + 1}')
        return o, mid

    def sparse_build(self):
        return [Ins(f'v_cndmask_b32 v{SPARSE + 8 * u + 2 * gi + h}, 0, v{WB + 2 * u + h}, s[{sM + 2 * gi}:{sM + 2 * gi + 1}]')
                for u in range(4) for gi in range(4) for h in range(2)]

    def pretouch_ox(self, L_, T):
        su = I(f'''
        s_lshl_b32 s{sT0}, s{sH}, 11
        s_add_u32 s{sT0}, s{sT0}, s{sRBH}
        s_add_u32 s{sT0}, s{sT0}, {OFo(L_)}
        s_lshl_b32 s{sT1}, s{sJ}, 11
        s_add_u32 s{sT1}, s{sT1}, s{sW16K}
        s_add_u32 s{sT1}, s{sT1}, s{sRB64K}
        s_add_u32 s{sT1}, s{sT1}, {XFo(2 * L_) - 2048}
        s_lshl_b32 s{sT2}, s{sRB}, 12
        s_lshl_b32 s{sT3}, s{sH}, 7
        s_add_u32 s{sT2}, s{sT2}, s{sT3}
        s_add_u32 s{sT2}, s{sT2}, {STo(2 * L_)}
        v_mov_b32 v{T}, {OOB}
        s_mov_b64 exec, 0xffff
        v_lshl_add_u32 v{T}, v{vL16}, 3, s{sT0}
        s_mov_b32 exec_lo, 0xffff0000
        v_lshl_add_u32 v{T}, v{vL16}, 3, s{sT1}
        s_mov_b64 exec, -1
        v_writelane_b32 v{T}, s{sT2}, 32''')
        return su, I(f'buffer_load_dword v{T}, v{T}, {WSR}, 0 offen sc1')

    def prep(self, T):
        u, cg, ks, st, t0, t1 = sS0, sS1, sS2, sT0, sT1, sT2
        SA, RA, RB_, DA = T + 16, T + 17, T + 18, T + 19
        it = I(f'''
        s_cmp_lt_u32 s{sGW}, 480
        s_cselect_b32 s{t0}, 352, 0
        s_cselect_b32 s{t1}, 0, 480
        s_add_u32 s{t0}, s{t0}, s{t1}
        s_sub_u32 s{u}, s{sGW}, s{t0}
        s_cmp_lt_u32 s{sGW}, 480
        s_cselect_b32 s{t0}, 16, 43
        s_mov_b32 s{t1}, {WS['W2']}
        s_cselect_b32 s{t1}, {WS['WO']}, s{t1}
        s_lshl_b32 s{SRD_P + 2}, s{t0}, 15
        s_and_b32 s{cg}, s{u}, 7
        s_lshr_b32 s{ks}, s{u}, 3
        s_mul_i32 s{t0}, s{t0}, s{cg}
        s_add_u32 s{t0}, s{t0}, s{ks}
        s_lshl_b32 s{t0}, s{t0}, 12
        s_add_u32 s{t1}, s{t1}, s{t0}
        s_cmp_lt_u32 s{sGW}, 824
        s_cselect_b32 s{t1}, s{t1}, {OOB}
        s_cselect_b32 s{SRD_P + 2}, s{SRD_P + 2}, 0
        s_cselect_b32 s{ks}, s{ks}, 0
        s_lshr_b32 s{u}, s{sGW}, 4
        s_and_b32 s{st}, s{sGW}, 15
        s_lshl_b32 s{t0}, s{u}, 6
        s_add_u32 s{t0}, s{t0}, s{st}
        s_lshl_b32 s{t0}, s{t0}, 10
        s_add_u32 s{t0}, s{t0}, {WS['W1']}
        s_cmp_lt_u32 s{sGW}, 352
        s_cselect_b32 s{SRD_P + 2}, {512 * 2752}, s{SRD_P + 2}
        s_cselect_b32 s{cg}, s{u}, s{cg}
        s_cselect_b32 s{ks}, s{st}, s{ks}
        s_cselect_b32 s{t1}, s{t0}, s{t1}
        s_movk_i32 s{st}, 1024
        s_cselect_b32 s{sPD}, 16384, s{st}
        s_cselect_b32 s{st}, 2752, s{st}
        s_cselect_b32 s{u}, 3, 4
        s_cselect_b32 s{t0}, 32, 8
        v_add_u32 v{DA}, s{t1}, v{vL16}
        v_bfe_u32 v{RA}, v{vL16}, 4, 2
        v_lshlrev_b32 v{RA}, s{u}, v{RA}
        v_bfe_u32 v{RB_}, v{vL16}, 6, 2
        v_lshl_add_u32 v{RA}, v{RB_}, 7, v{RA}
        v_lshrrev_b32 v{RB_}, 8, v{vL16}
        v_lshl_add_u32 v{RA}, v{RB_}, 10, v{RA}
        s_lshl_b32 s{u}, s{sW}, 12
        s_add_u32 s{u}, s{u}, {L_TS}
        v_add_u32 v{RA}, s{u}, v{RA}
        v_add_u32 v{RB_}, s{t0}, v{RA}
        s_lshl_b32 s{ks}, s{ks}, 5
        v_lshrrev_b32 v{SA}, 7, v{vL16}
        v_add_u32 v{SA}, s{ks}, v{SA}
        v_mul_u32_u24 v{SA}, s{st}, v{SA}
        v_and_b32 v{vA1}, 0x70, v{vL16}
        s_lshl_b32 s{cg}, s{cg}, 7
        v_add3_u32 v{SA}, v{SA}, v{vA1}, s{cg}
        s_lshl_b32 s{cg}, s{st}, 3''')
        st = cg
        pre, it = it, I(f'''
        s_cmp_lt_u32 s{sGW}, 480
        s_cselect_b64 s[{SRD_P}:{SRD_P + 1}], s[{pWO}:{pWO + 1}], s[{pW2}:{pW2 + 1}]
        s_cmp_lt_u32 s{sGW}, 352
        s_cselect_b64 s[{SRD_P}:{SRD_P + 1}], s[{pW1}:{pW1 + 1}], s[{SRD_P}:{SRD_P + 1}]''')
        dm = []
        for n in range(4):
            it += I(f's_add_u32 m0, s{u}, {n * 1024}')
            if n:
                it += I(f'v_add_u32 v{SA}, s{st}, v{SA}')
            d = Ins(f'buffer_load_dwordx4 v{SA}, {srd(SRD_P)}, 0 offen lds')
            it.append(d)
            dm.append(d)
        fin = [WaitVM([dm[-1]])]
        for q in range(4):
            for hf in range(2):
                fin += I(f'ds_read_b64_tr_b16 {v(T + 4 * q + 2 * hf, 2)}, v{RB_ if q & 1 else RA} offset:{(q >> 1) * 64 + hf * 512}')
        sto = []
        for q in range(4):
            if q:
                sto += I(f'v_add_u32 v{DA}, s{sPD}, v{DA}')
            sto += I(f'buffer_store_dwordx4 {v(T + 4 * q, 4)}, v{DA}, {WSR}, 0 offen sc1')
        return pre, it, fin, sto

    def clears(self, L_, T):
        su = [Ins(f'v_mov_b32 v{T + i}, -1') for i in range(4)]
        su += I(f'''
        v_mov_b32 v{T + 4}, {OOB}
        s_mov_b32 exec_lo, 0x00010001
        s_mov_b32 exec_hi, 0x00010001
        v_lshl_add_u32 v{T + 4}, v{vL16}, 1, s{sS2}
        s_mov_b64 exec, -1
        s_lshl_b32 s{sT0}, s{sRB}, 5
        s_add_u32 s{sT0}, s{sT0}, s{sS3}
        v_bfe_u32 v{T + 5}, v{vL16}, 5, 3
        v_lshlrev_b32 v{T + 5}, 15, v{T + 5}
        v_bfe_u32 v{vA1}, v{vL16}, 8, 1
        v_lshl_add_u32 v{T + 5}, v{vA1}, 4, v{T + 5}
        s_mov_b32 exec_lo, 0xaaaaaaaa
        s_mov_b32 exec_hi, 0
        v_add_u32 v{T + 4}, s{sT0}, v{T + 5}
        s_mov_b64 exec, -1
        v_add_u32 v{T + 5}, s{sS0}, v{vL16}''')
        st = I(f'''
        buffer_store_dwordx4 {v(T, 4)}, v{T + 5}, {WSR}, 0 offen sc1
        buffer_store_dwordx4 {v(T, 4)}, v{T + 4}, {WSR}, 0 offen sc1''')
        return su, st

    def kv_addrs(self, L_):
        return I(f'''
        s_lshl_b32 s{sT0}, s{sH}, 5
        s_add_u32 s{sT0}, s{sT0}, s{sRB}
        s_lshl_b32 s{sS0}, s{sT0}, 10
        s_add_u32 s{sS0}, s{sS0}, {WS["KVP"] + L_ * 1024 * KB}
        s_lshl_b32 s{sS1}, s{sH}, 11
        s_add_u32 s{sS1}, s{sS1}, {WS["ZP"] + L_ * 64 * KB}
        s_lshl_b32 s{sT0}, s{sRB}, 4
        s_add_u32 s{sS2}, s{sS1}, s{sT0}
        s_lshl_b32 s{sS3}, s{sH}, 10
        s_add_u32 s{sS3}, s{sS3}, {WS["KVF"] + L_ * 256 * KB}''')

    def phase_qkv(self, L_):
        A, e, pf = self.A, self.e, self.pf
        ACC, ACV, RING, CSK, CSV, CSQ = 28, 44, 60, 80, 84, 88
        NMU, RSL, XR, T = 92, 96, 97, 98
        P, E, PK, AD = 104, 120, 60, 136
        kmf = lambda tt, ks: (lambda b: mfma(v(ACC + 4 * tt, 4), R4(XS0[ks]), b, '0' if ks == 0 else None))
        vmf = lambda tt, ks: (lambda b: mfma(v(ACV + 4 * tt, 4), b, R4(XS1[ks]), '0' if ks == 0 else None))
        csk = lambda ks: mfma(v(CSK, 4), R4(XS0[ks]), ONE4, '0' if ks == 0 else None)
        csv = lambda ks: mfma(v(CSV, 4), ONE4, R4(XS1[ks]), '0' if ks == 0 else None)
        addr = I(f'''
        v_bfe_u32 v{AD + 1}, v{vL16}, 5, 2
        v_lshlrev_b32 v{AD + 1}, 4, v{AD + 1}
        v_lshl_add_u32 v{AD}, v{vL16}, 2, v{AD + 1}
        v_lshrrev_b32 v{AD + 4}, 6, v{vL16}
        v_bfe_u32 v{AD + 1}, v{vL16}, 7, 2
        v_bfe_u32 v{AD + 2}, v{vL16}, 5, 1
        v_xor_b32 v{AD + 1}, v{AD + 1}, v{AD + 2}
        v_lshlrev_b32 v{AD + 1}, 4, v{AD + 1}
        v_lshl_add_u32 v{AD + 4}, v{AD + 4}, 6, v{AD + 1}
        v_bfe_u32 v{AD + 2}, v{vL16}, 4, 1
        v_lshl_add_u32 v{AD + 4}, v{AD + 2}, 3, v{AD + 4}
        v_mov_b32 v{AD + 5}, {L_TS}
        v_lshl_add_u32 v{AD + 5}, s{sW1K}, 2, v{AD + 5}
        v_add_u32 v{AD}, v{AD + 5}, v{AD}
        v_add_u32 v{AD + 4}, v{AD + 5}, v{AD + 4}
        v_xor_b32 v{AD + 1}, 16, v{AD}
        v_xor_b32 v{AD + 2}, 32, v{AD}
        v_xor_b32 v{AD + 3}, 48, v{AD}
        v_xor_b32 v{AD + 5}, 32, v{AD + 4}''')
        saddr = I(f'''
        v_and_b32 v{T}, 0xf0, v{vL16}
        v_add_u32 v{T}, {L_STAT}, v{T}
        v_lshrrev_b32 v{T + 2}, 8, v{vL16}
        v_lshl_add_u32 v{T + 1}, v{T + 2}, 2, v{T}
        v_lshlrev_b32 v{T + 2}, 4, v{T + 2}
        v_add_u32 v{T + 2}, {L_STAT + 512}, v{T + 2}''')
        RB3 = CSQ
        sreads = I(f'''
        ds_read_b128 {v(NMU, 4)}, v{T}
        ds_read_b32 v{RSL}, v{T + 1} offset:256''')
        for tt in range(4):
            sreads += I(f'''
            ds_read_b128 {v(E + 4 * tt, 4)}, v{T + 2} offset:{tt * 64}
            ds_read_b128 {v(P + 4 * tt if tt < 3 else RB3, 4)}, v{T + 2} offset:{256 + tt * 64}''')
        rsl = I(f'v_mul_f32 v{RSL}, {f32(1.4426950408889634)}, v{RSL}')
        fix = lambda tt: self.kfix(ACC, CSK, NMU, tt) + self.vfix(ACV, CSV, E + 4 * tt, P + 4 * tt if tt < 3 else RB3, tt)

        if L_ == 0:
            tail = self.qkv0_pass(ACC, ACV, RING, XR, T, P, E, AD, kmf, vmf, csk, csv, addr, saddr, sreads)
            xr = XR
            A.add(tail[0])
            seq = list(rsl)
            for tt in range(4):
                for h in range(2):
                    seq += I(f'v_pk_fma_f32 {v(ACC + 4 * tt + 2 * h, 2)}, {v(CSK + 2 * h, 2)}, {v(NMU + (tt & 2), 2)}, {v(ACC + 4 * tt + 2 * h, 2)} op_sel:[0,{tt & 1},0] op_sel_hi:[1,{tt & 1},1]')
            for i in range(6):
                seq += I(f'v_pk_fma_f32 {v(ACV + 2 * i, 2)}, {v(E + 2 * i, 2)}, {v(CSV, 2)}, {v(ACV + 2 * i, 2)}')
            for i in range(6):
                seq += I(f'v_pk_mul_f32 {v(ACV + 2 * i, 2)}, {v(ACV + 2 * i, 2)}, {v(P + 2 * i, 2)}')
            for i in range(8):
                seq += I(f'v_cvt_pk_bf16_f32 v{ACC + 8 * (i >> 2) + (i & 3)}, v{ACC + 2 * i}, v{ACC + 2 * i + 1}')
            A.add(seq)
            vcv = [Ins(f'v_cvt_pk_bf16_f32 v{ACV + 8 * (i >> 2) + (i & 3)}, v{ACV + 2 * i}, v{ACV + 2 * i + 1}') for i in range(6)]
        else:
            ST = 128
            su, sl = self.stats_load(1, ST)
            du, rounds = self.dma_x(1, XR)
            pu, ptl = self.pretouch_ox(1, 143)
            A.add(su + du + pu + self.kv_addrs(L_) + self.cs_addr(vA0))
            A.add(self.cs_load(vA0, [(CSK, 0)]))
            A.add(I(f'''
            v_bfe_u32 v{vA0}, v{vL16}, 4, 4
            v_lshl_add_u32 v{vA0}, v{vA0}, 2, s{sT0}
            ds_read_b32 v{CSV}, v{vA0} offset:{5 * 64}'''))
            self.signal(self.x_stores, 3)
            n = sum(1 for x in pf.q if x.kind == 'vmem') - 16
            A.add(pf.take(n))
            self.wait_flags(3)
            self.stamp('x2wait')
            NR0 = int(OPT.get('nr0', 6))
            for r in rounds[:NR0]:
                A.add(r)
            steps = [(tt, ks, [kmf(tt, ks), vmf(tt, ks)]) for tt in range(4) for ks in range(16)]
            sc = self.stats_combine(ST, False)
            mf, pins, first = self.lds_pass(vL16, RING, 5, 4, steps, self.x_gate(rounds, {32: [WaitLG([sc[-1]])]}))
            dm = paced(rounds[NR0] + sl + [x for r in rounds[NR0 + 1:] for x in r] + (ptl if int(OPT.get('pt', 1)) else []), 0, 4)
            b32 = first[32 - 4] + 1
            f1 = at(0, saddr + addr) + at(30, sc) + at(b32, sreads) + at(first[32] + 4, rsl + fix(0) + fix(1)) \
                + at(first[48] + 4, fix(2)) + at(first[56], self.sparse_build())
            f2 = paced(pf.take(16), 54, 4.6)
            body, left = sched(mf, pins, [dm, f1, f2])
            A.add(body)
            print('kv pass leftovers', [len(x) for x in left])
            A.add(left[0] + left[2] + self.kfix(ACC, CSK, NMU, 3) + left[1])
            xr = vL16
        self.stamp('kvpass')
        body, left = sched(self.phi_mfma(ACC, P), {}, [at(0, (vcv if L_ == 0 else []) + self.vfix(ACV, CSV, E + 12, RB3, 3))])
        A.add(body + left[0])
        sm, mid = self.softmax(RSL, P, E, T, lambda sg, i: PK + 8 * sg + i)
        wr = [Ins(f'ds_write_b128 v{AD + q}, {v(PK + 4 * q, 4)}') for q in range(4)]
        AF = E
        rd = [[Ins(f'ds_read_b64_tr_b16 {v(AF + 8 * sg + 4 * m + 2 * hf, 2)}, v{AD + 4 + sg} offset:{(32 * m + 16 * hf) * 64}')
               for m in range(2) for hf in range(2)] for sg in range(2)]
        seq = sm[:mid] + wr[:2] + rd[0] + sm[mid:] + wr[2:] + rd[1]
        if L_ == 0:
            chk = 60 + 16
            pl = I(f'buffer_load_dwordx4 {v(chk, 4)}, v{vPF}, {WSR}, 0 offen sc1')
            seq = spread(seq, pl, float(OPT.get('plat', 0.8)), 1.0)
            seq = spread(seq, tail[1], 0.0, 0.3)
            if self.pflag_late:
                k = int(len(seq) * float(OPT.get('pfat', 0.3)))
                while seq[k].kind == 'vmem' or seq[k - 1].kind == 'salu':
                    k += 1
                seq[k:k] = self.pflag_late
            A.add(seq)
        else:
            pf.push(self.load_w1(0))
            pf.push(self.load_w1(1, range(8, 16)))
            A.add(spread(seq, pf.take(int(OPT.get('n_kepi1', 10)))))
        KV, Z = P, P + 8
        VP = lambda m: v(ACV + 8 * m, 4)
        mm = []
        for sg in range(2):
            mm += [mfma(v(KV + 4 * sg, 4), v(AF + 8 * sg + 4 * m, 4), VP(m), '0' if m == 0 else None) for m in range(2)]
            mm += [mfma(v(Z + 4 * sg, 4), v(AF + 8 * sg + 4 * m, 4), ONE4, '0' if m == 0 else None) for m in range(2)]
        sa = I(f'v_lshlrev_b32 v{vA0}, 1, v{vL16}')
        body, left = sched(mm, {}, [at(0, sa)])
        A.add(body + left[0])
        KB_, ZB_ = PK, PK + 4
        for i in range(4):
            e(f'v_cvt_pk_bf16_f32 v{KB_ + i}, v{KV + 2 * i}, v{KV + 2 * i + 1}')
        for i in range(4):
            e(f'v_min_u32 v{KB_ + i}, -2, v{KB_ + i}')
        e(f'buffer_store_dwordx4 {v(KB_, 4)}, v{vL16}, {WSR}, s{sS0} offen sc1')
        for i in range(4):
            e(f'v_cvt_pk_bf16_f32 v{ZB_ + i}, v{Z + 2 * i}, v{Z + 2 * i + 1}')
        for i in range(4):
            e(f'v_min_u32 v{ZB_ + i}, -2, v{ZB_ + i}')
        e('s_mov_b32 exec_lo, 0x00010001')
        e('s_mov_b32 exec_hi, 0x00010001')
        e(f'buffer_store_dwordx4 {v(ZB_, 4)}, v{vA0}, {WSR}, s{sS2} offen sc1')
        e('s_mov_b64 exec, -1')
        self.stamp('kepi')
        if L_ == 0:
            A.wait_vm(self.q_toks)
            self.stamp('qarr')
            A.wait_vm(pl)
            self.stamp('plarr')
            Lc, Lo, Le = self.label(), self.label(), self.label()
            xor4 = lambda sr: '\n'.join(f'v_xor_b32 v{chk + i}, s{sr}, v{chk + i}' for i in range(4))
            or4 = f'v_or3_b32 v{vA0}, v{chk}, v{chk + 1}, v{chk + 2}\nv_or_b32 v{vA0}, v{vA0}, v{chk + 3}'
            A.raw(f'''
            s_cmp_lg_u32 s{sW}, 0
            s_cbranch_scc1 {Le}
            s_mov_b32 s{sCNT}, 0
            {Lc}:
            {xor4(sNONCE)}
            {or4}
            v_cmp_lt_u32 vcc, 7, v{vA0}
            s_cbranch_vccz {Lo}
            s_sleep 2
            {pl[0].text}
            s_add_u32 s{sCNT}, s{sCNT}, 1
            s_cmp_lt_u32 s{sCNT}, {TIMEOUT}
            s_waitcnt vmcnt(0)
            s_cbranch_scc1 {Lc}
            {Lo}:
            {xor4(sXCC)}
            {or4}
            v_cmp_ne_u32 vcc, 0, v{vA0}
            s_lshl_b32 s{sT0}, s{sRB}, 1
            s_lshr_b64 s[{sT2}:{sT3}], vcc, s{sT0}
            s_and_b32 s{sT2}, s{sT2}, 3
            s_cselect_b32 s{sFAST}, 0, {0 if FORCE_SLOW else 1}
            s_cmp_lg_u32 s2, 0
            s_cbranch_scc1 {Le}
            v_mov_b32 v{vA0}, s{sNONCE}
            s_mov_b64 exec, 1
            buffer_store_dword v{vA0}, v{vL16}, {WSR}, 0 offen sc1
            s_mov_b64 exec, -1
            {Le}:''')
            e('s_barrier')
            self.stamp('prepchk')
            for ks in range(16):
                for hf in range(2):
                    e(f'ds_read_b64_tr_b16 {R2(XS2[ks], hf)}, v{self.vTR} offset:{ks * 4096 + hf * 512}')
            QF = 120
            A.add(I(f'''
            s_and_b32 s{sT0}, s{sRB}, 15
            s_lshl_b32 s{sT1}, s{sT0}, 12
            v_add_u32 v{vA0}, s{sT1}, v{self.vTR}
            ds_read_b64_tr_b16 {v(QF, 2)}, v{vA0}
            ds_read_b64_tr_b16 {v(QF + 2, 2)}, v{vA0} offset:512
            s_add_u32 s{sT0}, s{sT0}, s{sROT4}
            s_and_b32 s{sT0}, s{sT0}, 15
            s_add_u32 s{sT0}, s{sT0}, 32
            s_lshl_b32 s{sT0}, s{sT0}, 10
            s_add_u32 s{sT0}, s{sT0}, s{sB_WQ}
            s_cmp_lt_u32 s{sRB}, 16
            s_cselect_b32 s{sT0}, s{sT0}, {OOB}
            v_add_u32 v{vA1}, s{sT0}, v{vL16}'''))
            A.add(self.cs_addr(vA3) + self.cs_save(vA3, [(CSK, 0)]))
            A.add(I(f'''
            v_lshrrev_b32 v{vA0}, 2, v{vL16}
            v_add_u32 v{vA0}, s{sT0}, v{vA0}
            s_mov_b64 exec, 0xffff
            ds_write_b32 v{vA0}, v{CSV} offset:{5 * 64}
            s_mov_b64 exec, -1'''))
            A.wait_lg()
            e('s_barrier')
            late = I(f'buffer_store_dwordx4 {v(QF, 4)}, v{vA1}, {WSR}, 0 offen sc1')
            A.add(late + self.kv_addrs(1))
            cu, cst = self.clears(1, 124)
            A.add(cu + cst + self.kv_addrs(0))
            late += cst
            pf.push(self.load_wo())
            pf.push(self.load_w1(0))
            pf.push(self.load_w1(1, range(8, 16)))
        else:
            A.add(self.cs_addr(vA0) + self.cs_load(vA0, [(CSQ, 1)]))
        A.add(I(f'''
        s_lshl_b32 s{sS0}, s{sH}, 15
        s_lshl_b32 s{sT0}, s{sRB}, 5
        s_add_u32 s{sS0}, s{sS0}, s{sT0}
        s_add_u32 s{sS0}, s{sS0}, {WS["KVP"] + L_ * 1024 * KB}
        s_add_u32 s{sS2}, s{sS3}, s{sT0}
        s_lshl_b32 s{sT0}, s{sX}, 15
        s_add_u32 s{sS3}, s{sS3}, s{sT0}
        s_lshl_b32 s{sS4}, s{sH}, 11
        s_add_u32 s{sS4}, s{sS4}, s{sRBH}
        s_add_u32 s{sS4}, s{sS4}, {OFo(L_)}'''))
        steps = []
        for ks in range(16):
            for tt in range(4):
                fns = [lambda b, tt=tt, ks=ks: mfma(v(ACC + 4 * tt, 4), R4(XS2[ks]), b, '0' if ks == 0 else None)]
                if tt == 0 and L_ == 0:
                    fns.append(lambda b, ks=ks: mfma(v(CSQ, 4), R4(XS2[ks]), ONE4, '0' if ks == 0 else None))
                steps.append((tt, ks, fns))
        mf, pins, first = self.lds_pass(xr, ACV, 9, 7, steps, lambda i: [], wait_every=2)
        H1, ZL, SEL, SEL8 = 80, 28, 136, 132
        GA, ZA, FA = 84, 85, 86
        su = I(f'''
        v_lshrrev_b32 v{GA}, 5, v{vL16}
        v_and_b32 v{FA}, 16, v{vL16}
        v_lshl_add_u32 v{GA}, v{GA}, 10, v{FA}
        v_and_b32 v{ZA}, 0xf0, v{vL16}
        v_lshrrev_b32 v{vA0}, 8, v{vL16}
        v_lshl_add_u32 v{ZA}, v{vA0}, 9, v{ZA}
        v_lshl_add_u32 v{FA}, v{vA0}, 3, v{FA}
        v_bfe_u32 v{vA1}, v{vL16}, 5, 3
        v_lshl_add_u32 v{FA}, v{vA1}, 15, v{FA}
        v_bfe_u32 v{vA1}, v{vL16}, 6, 2
        v_cmp_eq_u32 s[{sT2}:{sT3}], v{vA0}, v{vA1}
        v_bfe_u32 v{vA0}, v{vL16}, 4, 1
        v_lshlrev_b32 v{vA0}, 4, v{vA0}
        v_mov_b32 v{vA1}, 0x3f80
        v_lshlrev_b32 v{vA0}, v{vA0}, v{vA1}
        v_bfe_u32 v{vA1}, v{vL16}, 5, 3''')
        for m in range(4):
            su += I(f'''
            v_cmp_eq_u32 vcc, {m}, v{vA1}
            v_mov_b32 v{SEL + (0, 1, 4, 5)[m]}, 0
            v_nop
            v_cndmask_b32 v{SEL8 + m}, 0, v{vA0}, vcc''')
        su += I(f'''
        v_cndmask_b32 v{vA0}, 0, v{vA0}, s[{sT2}:{sT3}]
        v_and_b32 v{vA1}, 1, v{vA1}
        v_cmp_eq_u32 vcc, 0, v{vA1}
        v_cndmask_b32 v{SEL + 2}, 0, v{vA0}, vcc
        v_cndmask_b32 v{SEL + 3}, v{vA0}, 0, vcc''')
        h1 = I(f'''
        buffer_load_dwordx4 {v(H1, 4)}, v{GA}, {WSR}, s{sS0} offen sc1''')
        zl = I(f'''
        buffer_load_dwordx4 {v(ZL, 4)}, v{ZA}, {WSR}, s{sS1} offen sc1
        buffer_load_dwordx4 {v(ZL + 4, 4)}, v{ZA}, {WSR}, s{sS1} offen offset:256 sc1''')
        h1at = int(OPT.get(f'h1at{L_}', 40 if L_ else 20))
        pf.push(self.load_w1(2))
        nq = int(OPT.get(f'n_q{L_}', 14))
        qpf = paced(pf.take(nq), 0, len(mf) / max(nq, 1))
        for idx, it in qpf:
            if it.kind == 'vmem' and it.dst and it.dst[0][0] == 'v' and int(it.dst[0][1:]) >= 192:
                assert idx >= first[min(4 * ((int(it.dst[0][1:]) - 192) // 4) + 4, 63)], 'Q weights still live'
        body, left = sched(mf, pins, [at(0, su) + at(h1at, h1), qpf])
        print('q pass leftovers', [len(x) for x in left])
        A.add(body + left[0] + left[1])
        for tt in range(4):
            for h in range(2):
                e(f'v_pk_fma_f32 {v(ACC + 4 * tt + 2 * h, 2)}, {v(CSQ + 2 * h, 2)}, {v(NMU + (tt & 2), 2)}, {v(ACC + 4 * tt + 2 * h, 2)} op_sel:[0,{tt & 1},0] op_sel_hi:[1,{tt & 1},1]')
        for i in range(8):
            e(f'v_cvt_pk_bf16_f32 v{ACC + 8 * (i >> 2) + (i & 3)}, v{ACC + 2 * i}, v{ACC + 2 * i + 1}')
        A.add(self.phi_mfma(ACC, P))
        self.stamp('qpass')
        self.retry(h1, self.sentinel_check(list(range(H1, H1 + 4)), vA0))
        self.stamp('hop1')
        D1, ZS = 60, 64
        A.add([mfma(v(D1, 4), v(SEL8, 4), v(H1, 4), '0')])
        A.add(zl)
        for rot in (8, 4, 2):
            for i in range(4):
                e(f'v_add_f32_dpp v{D1 + i}, v{D1 + i}, v{D1 + i} row_ror:{rot} row_mask:0xf bank_mask:0xf')
        e(f'v_cvt_pk_bf16_f32 v{D1}, v{D1}, v{D1 + 1}')
        e(f'v_cvt_pk_bf16_f32 v{D1 + 1}, v{D1 + 2}, v{D1 + 3}')
        e(f'v_min_u32 v{D1}, -2, v{D1}')
        e(f'v_min_u32 v{D1 + 1}, -2, v{D1 + 1}')
        if L_ == 0:
            A.wait_vm(late)
        e('s_mov_b32 exec_hi, 0')
        e(f'buffer_store_dwordx2 {v(D1, 2)}, v{FA}, {WSR}, s{sS2} offen sc1')
        e('s_mov_b64 exec, -1')
        RQ, AZ, AKV = 44, 72, 76
        sm, _ = self.softmax(RSL, P, E, T, lambda sg, i: RQ + 4 * (i >> 1) + 2 * sg + (i & 1))
        zr = []
        for rot in (8, 4, 2, 1):
            zr += [Ins(f'v_add_f32_dpp v{ZS + i}, v{ZS + i}, v{ZS + i} row_ror:{rot} row_mask:0xf bank_mask:0xf') for i in range(8)]
        zr += [Ins(f'v_cvt_pk_bf16_f32 v{AZ + i}, v{ZS + 2 * i}, v{ZS + 2 * i + 1}') for i in range(4)]
        sw = []
        for p in range(4):
            sw += I(f'''v_permlane32_swap_b32 v{RQ + p}, v{RQ + 8 + p}
            v_permlane32_swap_b32 v{RQ + 4 + p}, v{RQ + 12 + p}''')
        for p in range(4):
            sw += I(f'''v_permlane16_swap_b32 v{RQ + p}, v{RQ + 4 + p}
            v_permlane16_swap_b32 v{RQ + 8 + p}, v{RQ + 12 + p}''')
        h2 = I(f'buffer_load_dwordx4 {v(AKV, 4)}, v{vL16}, {WSR}, s{sS3} offen sc1')
        pf.push(self.load_w1(1, range(8)))
        if L_ == 0:
            A.add(self.cs_save(vA3, [(CSQ, 1)]))
        frac = float(OPT.get('h2at', 0.85))
        seq = sm
        seq = spread(seq, pf.take(int(OPT.get(f'n_qs{L_}', 10))), 0.0, frac)
        seq = spread(seq, h2, frac, 1.0)
        A.add(seq)
        self.retry(zl, self.sentinel_check(list(range(ZL, ZL + 8)), vA0))
        zm = []
        for n in range(2):
            zm += [mfma(v(ZS, 4), v(SEL + 2, 4), v(ZL + 4 * n, 4), '0' if n == 0 else None),
                   mfma(v(ZS + 4, 4), v(SEL, 4), v(ZL + 4 * n, 4), '0' if n == 0 else None)]
        body, left = sched(zm, {}, [at(0, sw)])
        A.add(spread(body + left[0] + zr, pf.take(int(OPT.get(f'n_z{L_}', 4)))))
        NUM, DEN = 80, 96
        A.add([mfma(v(DEN + 4 * tt, 4), v(AZ, 4), v(RQ + 4 * tt, 4), '0') for tt in range(4)])
        A.add(pf.take(int(OPT.get(f'n_h2{L_}', 0))))
        for tt in range(4):
            e(f'v_add_f32 v{DEN + 4 * tt}, {f32(1e-6)}, v{DEN + 4 * tt}')
        for tt in range(4):
            e(f'v_rcp_f32 v{DEN + 4 * tt}, v{DEN + 4 * tt}')
        self.stamp('qepi')
        self.retry(h2, self.sentinel_check(list(range(AKV, AKV + 4)), vA0))
        self.stamp('hop2')
        A.add([mfma(v(NUM + 4 * tt, 4), v(AKV, 4), v(RQ + 4 * tt, 4), '0') for tt in range(4)])
        OP = 112
        st = []
        for tp in range(2):
            for i in range(8):
                e(f'v_mul_f32 v{NUM + 8 * tp + i}, v{NUM + 8 * tp + i}, v{DEN + 8 * tp + (i & 4)}')
            for i in range(4):
                e(f'v_cvt_pk_bf16_f32 v{OP + 4 * tp + i}, v{NUM + 8 * tp + 2 * i}, v{NUM + 8 * tp + 2 * i + 1}')
            e(f'v_permlane16_swap_b32 v{OP + 4 * tp}, v{OP + 4 * tp + 2}')
            e(f'v_permlane16_swap_b32 v{OP + 4 * tp + 1}, v{OP + 4 * tp + 3}')
            st.append(e(f'buffer_store_dwordx4 {v(OP + 4 * tp, 4)}, v{vL16}, {WSR}, s{sS4} offen{off(tp * 1024)}{SC0(L_ == 0)}'))
        self.stamp('o')
        A.add(pf.take(int(OPT.get(f'n_o{L_}', 5))))
        self.o_stores = st + (self.wo_toks if L_ == 0 else [])

    def qkv0_pass(self, ACC, ACV, RING, XR, T, P, E, AD, kmf, vmf, csk, csv, addr, saddr, sreads):
        A = self.A
        GR, SM, SF = P, P + 4, P + 8
        vS = E + 4
        trs = lambda c: [Ins(f'ds_read_b64_tr_b16 {R2(XS[p][2 * c + kl], hf)}, v{self.vTR} offset:{(c & 3) * 16384 + (2 * p + kl) * 4096 + hf * 512}')
                         for kl in range(2) for p in range(2) for hf in range(2)]
        tr = [trs(c) for c in range(8)]
        sks = {0: [0, 1], 1: [2, 3], 2: [4, 5], 3: [6, 7], 4: [8, 9, 10, 11], 5: [12, 13, 14, 15]}
        steps = []
        srd_ = {}
        n = 0
        for c in range(8):
            todo = list(sks.get(c, []))
            for kl in range(2):
                ks = 2 * c + kl
                for tt in range(4):
                    fns = [kmf(tt, ks), vmf(tt, ks)]
                    if tt == 3:
                        fns += [lambda b, ks=ks: csk(ks), lambda b, ks=ks: csv(ks)]
                    if todo and tt in (1, 3) and (len(sks[c]) == 4 or tt == 1):
                        k2 = todo.pop(0)
                        fb = v(SF + 4 * (n % 3), 4)
                        srd_[len(steps)] = Ins(f'ds_read_b128 {fb}, v{vS} offset:{L_ACT + k2 * 1024}')
                        fns += [lambda b, fb=fb, k2=k2: mfma(v(GR, 4), fb, fb, '0' if k2 == 0 else None),
                                lambda b, fb=fb, k2=k2: mfma(v(SM, 4), ONE4, fb, '0' if k2 == 0 else None)]
                        n += 1
                    steps.append((tt, ks, fns))
        sf = I(f'''
        v_bfe_u32 v{vA0}, v{vL16}, 4, 2
        v_cmp_eq_u32 vcc, 1, v{vA0}
        v_cmp_eq_u32 s[{sT2}:{sT3}], 2, v{vA0}
        v_bfe_u32 v{SF + 2}, v{vL16}, 4, 4
        v_cndmask_b32 v{GR}, v{GR}, v{GR + 1}, vcc
        v_cmp_eq_u32 vcc, 3, v{vA0}
        v_cndmask_b32 v{GR}, v{GR}, v{GR + 2}, s[{sT2}:{sT3}]
        v_lshrrev_b32 v{SF + 3}, 8, s{sW1K}
        v_cndmask_b32 v{GR}, v{GR}, v{GR + 3}, vcc
        v_lshl_add_u32 v{SF + 1}, v{SF + 2}, 4, v{SF + 3}
        v_lshlrev_b32 v{SF + 3}, 4, v{SF + 3}
        v_lshl_add_u32 v{SF + 2}, v{SF + 2}, 2, v{SF + 3}
        v_add_u32 v{SF + 1}, {L_STAT}, v{SF + 1}
        v_add_u32 v{SF + 2}, {L_STAT + 512}, v{SF + 2}''')
        sf += self.stats_math(SM, GR, SF, False)
        swr = I(f'''
        s_mov_b32 exec_lo, 0x00f0000f
        s_mov_b32 exec_hi, 0xf0000f00
        ds_write_b32 v{SF + 1}, v{SM}
        ds_write_b32 v{SF + 1}, v{SF} offset:256
        ds_write_b32 v{SF + 2}, v{SM}
        ds_write_b32 v{SF + 2}, v{SF} offset:256
        s_mov_b64 exec, -1''')
        Lf = self.label()
        B = Asm()
        B.raw(f'''
        s_cmp_lg_u32 s{sW}, 0
        s_cbranch_scc1 {Lf}
        s_lshl_b32 s{sT0}, s{sRB}, 8
        s_lshr_b32 s{sT1}, s{sJ}, 2
        s_mul_i32 s{sT1}, s{sT1}, 112
        s_add_u32 s{sT0}, s{sT0}, s{sT1}
        s_lshl_b32 s{sT1}, s{sJ}, 2
        s_add_u32 s{sT0}, s{sT0}, s{sT1}
        s_add_u32 s{sT0}, s{sT0}, {WS['PFLAG']}
        s_or_b32 s{sT1}, s{sNONCE}, s{sXCC}
        v_mov_b32 v{vA1}, s{sT1}
        v_lshlrev_b32 v215, 9, v{vL16}
        s_mov_b64 exec, 0xff
        buffer_store_dword v{vA1}, v215, {WSR}, s{sT0} offen sc1
        s_mov_b64 exec, -1
        {Lf}:''')
        pflag_c = int(OPT.get('pflag', 3))
        def wq_pub(c):
            Lw = self.label()
            C = Asm()
            C.raw(f'''
            s_cmp_lg_u32 s{sPC_}, {c}
            s_cbranch_scc1 {Lw}
            ds_read_b64_tr_b16 v[216:217], v220 offset:{(c & 3) * 16384}
            ds_read_b64_tr_b16 v[218:219], v220 offset:{(c & 3) * 16384 + 512}
            s_waitcnt lgkmcnt(0)
            buffer_store_dwordx4 v[216:219], v221, {WSR}, 0 offen sc1
            {Lw}:''')
            return C.items

        def gate(i):
            out = []
            if i % 8 == 0:
                c = i // 8
                w = list(self.c_toks[c])
                if c == pflag_c:
                    w += self.prep_stores
                out += [WaitVM(w), WaitLG(tr[c - 1] if c else []), Ins('s_barrier')]
                if c == pflag_c:
                    out += B.items
                if PROFILE and (c in (0, 2, 4, 6) or int(OPT.get('fine', 0))):
                    self.names.append(f'gate{c}')
                    out += I(f'''s_memtime s[{sTM}:{sTM + 1}]
                    s_waitcnt lgkmcnt(0)
                    v_writelane_b32 v{vSTAMP}, s{sTM}, {self.nstamp}''')
                    self.nstamp += 1
                out += tr[c][:4] if c == 0 else tr[c][:1]
            return out
        A.add(I(f'v_add_u32 v{vS}, s{sW16K}, v{XR}'))
        mf, pins, first = self.lds_pass(XR, RING, 5, 4, steps, gate)
        for i, r in srd_.items():
            pins.setdefault(first[max(i - 2, 0)] + 1, []).append(r)
        trs_, dms = [], []
        for c in range(8):
            g0 = first[8 * c - 4] if c else -1
            for k, r in enumerate(tr[c][4:] if c == 0 else tr[c][1:]):
                trs_.append((g0 + 1 + k, r))
            pins.setdefault(first[8 * c + 2], []).extend(wq_pub(c))
            dms += paced(self.later[c], g0 + 2, float(OPT.get('dpace', 3)) if c else 2)
        f0 = []
        f1 = at(0, saddr + addr) + at(first[33], self.masks) + at(first[int(OPT.get('wpat', 40))], self.wphi_perm) \
            + at(first[48] + 1, sf) + at(0, self.sparse_build()) + at(first[59], self.kv_addrs(0))
        pins.setdefault(first[56] + 1, []).extend(swr)
        pins.setdefault(first[58] + 1, []).extend(([WaitVM(self.prep_stores)] if pflag_c == 8 else []) + [WaitLG([swr[-2]] + tr[7]), Ins('s_barrier')] + (B.items if pflag_c == 8 else []))
        self.pflag_late = [WaitVM(self.prep_stores), Ins('s_barrier')] + B.items if pflag_c == 9 else []
        b7 = first[58] + 2
        body, left = sched(mf, pins, [trs_, f0, dms, f1, at(b7, sreads)], budget=int(OPT.get('b0', 12)))
        del left[1]
        print('qkv0 leftovers', [len(x) for x in left])
        assert not left[0]
        order = {id(x): k for k, x in enumerate(body)}
        assert order[id(sf[-1])] < order[id(swr[0])]
        assert order[id(self.xlast)] < order[id(self.masks[0])]
        for c in range(8):
            for k, r in enumerate(tr[c]):
                assert order[id(r)] < order[id(mf[first[8 * c + (k & 4)]])]
        A.add(body)
        return left[3] + left[2] + left[1], self.c_dma[11]

    def unpack_res(self, ACC, BIAS=None):
        e = self.e
        for i in range(8):
            e(f'v_lshlrev_b32 v{ACC + 2 * i}, 16, v{RES + i}')
            e(f'v_and_b32 v{ACC + 2 * i + 1}, s{sMASKHI}, v{RES + i}')
        if BIAS is not None:
            for i in range(8):
                e(f'v_lshlrev_b32 v{vA0}, 16, v{BIAS + i}')
                e(f'v_and_b32 v{vA1}, s{sMASKHI}, v{BIAS + i}')
                e(f'v_add_f32 v{ACC + 2 * i}, v{ACC + 2 * i}, v{vA0}')
                e(f'v_add_f32 v{ACC + 2 * i + 1}, v{ACC + 2 * i + 1}, v{vA1}')

    def rowmajor_off(self, va, vt):
        return I(f'''
        v_bfe_u32 v{va}, v{vL16}, 4, 4
        v_lshrrev_b32 v{vt}, 8, v{vL16}
        v_lshlrev_b32 v{vt}, 4, v{vt}
        v_lshl_add_u32 v{va}, v{va}, 10, v{vt}
        s_lshl_b32 s{sT1}, s{sJ}, 7
        s_add_u32 s{sT0}, s{sW16K}, s{sT1}
        s_add_u32 s{sT0}, s{sT0}, s{sRB64K}
        v_add_u32 v{va}, s{sT0}, v{va}''')

    def x_addrs(self, inst, va, T):
        if inst < 0:
            return self.rowmajor_off(va, T)
        o = I(f'''
        s_lshl_b32 s{sT1}, s{sJ}, 11
        s_add_u32 s{sS0}, s{sW16K}, s{sT1}
        s_add_u32 s{sS0}, s{sS0}, s{sRB64K}
        s_add_u32 s{sS0}, s{sS0}, {XFo(inst)}
        s_lshl_b32 s{sS1}, s{sRB}, 12
        s_lshl_b32 s{sT1}, s{sH}, 7
        s_add_u32 s{sS1}, s{sS1}, s{sT1}
        s_add_u32 s{sS1}, s{sS1}, {STo(inst)}
        v_bfe_u32 v{va}, v{vL16}, 4, 4
        v_lshrrev_b32 v{T}, 9, v{vL16}
        v_lshlrev_b32 v{T}, 2, v{T}
        v_lshl_add_u32 v{va}, v{va}, 3, v{T}''')
        return o

    def finish_x(self, ACC, inst, va, T):
        e = self.e
        st = []
        for a in range(2):
            for r in range(4):
                e(f'v_cvt_pk_bf16_f32 v{RES + 4 * a + r}, v{ACC + 8 * a + 2 * r}, v{ACC + 8 * a + 2 * r + 1}')
            if inst < 0:
                st.append(e(f'buffer_store_dwordx4 {v(RES + 4 * a, 4)}, v{va}, {srd(SRD_OUT)}, 0 offen{off(a * 64)}{" sc1" if int(OPT.get("outsc", 0)) else ""}'))
            else:
                st.append(e(f'buffer_store_dwordx4 {v(RES + 4 * a, 4)}, v{vL16}, {WSR}, s{sS0} offen{off(a * 1024)}{SC0(inst == 0)}'))
        if inst < 0:
            return st
        e(f'v_dot2_f32_bf16 v{T}, v{RES}, s{sONE}, 0')
        e(f'v_dot2_f32_bf16 v{T + 1}, v{RES}, v{RES}, 0')
        for i in range(1, 8):
            e(f'v_dot2_f32_bf16 v{T}, v{RES + i}, s{sONE}, v{T}')
            e(f'v_dot2_f32_bf16 v{T + 1}, v{RES + i}, v{RES + i}, v{T + 1}')
        e(f'v_permlane32_swap_b32 v{T}, v{T + 1}')
        e(f'v_add_f32 v{T}, v{T}, v{T + 1}')
        e(f'v_mov_b32 v{T + 1}, v{T}')
        e(f'v_permlane16_swap_b32 v{T}, v{T + 1}')
        e('s_mov_b32 exec_lo, 0xffff')
        e('s_mov_b32 exec_hi, 0xffff')
        e(f'v_add_f32 v{T}, v{T}, v{T + 1}')
        st.append(e(f'buffer_store_dword v{T}, v{va}, {WSR}, s{sS1} offen{SC0(inst == 0)}'))
        e('s_mov_b64 exec, -1')
        return st

    def phase_wo(self, L_):
        A, e, pf = self.A, self.e, self.pf
        ACC, RING, NR, D, BUF = 28, 44, 8, 7, 76
        vG, vW, vS, T = 140, 141, 142, 143
        self.unpack_res(ACC)
        A.add(I(f'''
        s_lshr_b32 s{sT0}, s{sW}, 1
        s_lshl_b32 s{sT0}, s{sT0}, 10
        s_and_b32 s{sT1}, s{sW}, 1
        s_lshl_b32 s{sT1}, s{sT1}, 8
        s_add_u32 s{sT0}, s{sT0}, s{sT1}
        s_add_u32 s{sT0}, s{sT0}, s{sRBH}
        s_add_u32 s{sT0}, s{sT0}, {OFo(L_)}
        v_add_u32 v{vG}, s{sT0}, v{vGATH}
        v_add_u32 v{vW}, {L_WOW}, v{vL16}'''))
        A.add(self.x_addrs(2 * L_, vS, 136))
        self.signal(self.o_stores, 4 * L_ + 0)
        A.add(pf.take(int(OPT.get(f'n_os{L_}', 3))))
        rd = [Ins(f'ds_read_b128 {v(RING + 4 * (i % NR), 4)}, v{vW} offset:{i * 1024}') for i in range(64)]
        A.add(rd[:D])
        self.wait_flags(4 * L_ + 0)
        self.stamp('owait')
        ld = [self.ld(v(BUF + 4 * ks, 4), vG, ks, 0, ' sc1') for ks in range(16)]
        NB0 = 6
        mf, pins = [], {-1: ld[:NB0]}
        for i in range(64):
            mf.append(mfma(v(ACC + 4 * (i & 3), 4), v(RING + 4 * (i % NR), 4), v(BUF + 4 * (i >> 2), 4)))
            p = []
            if i + D < 64:
                p.append(rd[i + D])
            if i % 2 == 1 and i + 1 < 64:
                p.append(WaitLG([rd[min(i + 2, 63)]]))
            if i % 4 == 0 and NB0 + i // 4 < 16:
                p.append(ld[NB0 + i // 4])
            pins[i] = p
        body, _ = sched(mf, pins, [])
        A.add(body)
        self.stamp('wopass')
        self.x_stores = self.finish_x(ACC, 2 * L_, vS, 44)
        self.stamp('woepi')
        A.add(pf.take(int(OPT.get(f'n_wo{L_}', 5))))

    def gelu_scalar(self, X, CS, B1, NMU, RS, W_, VC2, O):
        c1 = -2 * 0.7978845608028654 * 1.4426950408889634
        o = []
        R = range(4)
        o += [f'v_fmac_f32 v{X + r}, v{CS + r}, v{NMU}' for r in R]
        o += [f'v_fma_f32 v{X + r}, v{X + r}, v{RS}, v{B1 + r}' for r in R]
        o += [f'v_mul_f32 v{W_ + r}, v{X + r}, v{X + r}' for r in R]
        o += [f'v_fmaak_f32 v{W_ + r}, v{VC2}, v{W_ + r}, {f32(c1)}' for r in R]
        o += [f'v_mul_f32 v{W_ + r}, v{W_ + r}, v{X + r}' for r in R]
        o += [f'v_exp_f32 v{W_ + r}, v{W_ + r}' for r in R]
        o += [f'v_add_f32 v{W_ + r}, 1.0, v{W_ + r}' for r in R]
        o += [f'v_rcp_f32 v{W_ + r}, v{W_ + r}' for r in R]
        o += [f'v_mul_f32 v{X + r}, v{X + r}, v{W_ + r}' for r in R]
        o += [f'v_cvt_pk_bf16_f32 v{O + h}, v{X + 2 * h}, v{X + 2 * h + 1}' for h in range(2)]
        return [Ins(t) for t in o]

    def phase_up(self, L_):
        A, e, pf = self.A, self.e, self.pf
        ACC, RING, NR, D = 28, 76, 5, 4
        CS, B1, NMU, RS = 96, 108, 120, 124
        T = 128
        vX, vH0, vH1, VC2, vSA = 136, 137, 138, 139, 140
        A.add(I(f'''
        s_lshl_b32 s{sT0}, s{sH}, 5
        v_lshrrev_b32 v{vA0}, 8, v{vL16}
        v_lshl_add_u32 v{vA0}, v{vA0}, 3, s{sT0}'''))
        for t in range(3):
            e(f'buffer_load_dwordx2 {v(B1 + 4 * t + 2, 2)}, v{vA0}, {srd(SRD_B1)}, 0 offen{off(t * 1024)}')
        su, sl = self.stats_load(2 * L_, T)
        du, rounds = self.dma_x(2 * L_, vX)
        A.add(su + du)
        A.add(I(f'''
        s_lshl_b32 s{sT1}, s{sH}, 11
        s_add_u32 s{sT0}, s{sRBH}, s{sT1}
        s_add_u32 s{sT0}, s{sT0}, {HFo(L_)}
        v_add_u32 v{vH0}, s{sT0}, v{vL16}
        v_lshlrev_b32 v{vA0}, 3, v{vL16}
        v_and_b32 v{vA0}, 0x780, v{vA0}
        v_lshrrev_b32 v{vA1}, 8, v{vL16}
        v_lshl_add_u32 v{vA0}, v{vA1}, 16, v{vA0}
        v_mov_b32 v141, {OOB}
        s_cmp_lt_u32 s{sH}, 22
        s_cselect_b32 exec_hi, 0xffff, 0
        v_add_u32 v141, s{sT0}, v{vA0}
        s_mov_b64 exec, -1
        s_cselect_b32 s{sT0}, s{sT0}, {OOB}
        v_add_u32 v{vH1}, s{sT0}, v{vL16}
        s_mov_b32 s{sS2}, 65536
        s_mov_b32 s{sS3}, 131072
        v_mov_b32 v{VC2}, s{sC2}
        v_and_b32 v{vSA}, 0xf0, v{vL16}
        v_add_u32 v{vSA}, {L_STAT}, v{vSA}
        '''))
        cs = lambda t: [mfma(v(CS + 4 * t, 4), R4(XS[t][ks]), ONE4, '0' if ks == 0 else None) for ks in range(16)]
        bu = []
        for t in range(3):
            b = B1 + 4 * t
            bu += I(f'''v_lshlrev_b32 v{b}, 16, v{b + 2}
            v_and_b32 v{b + 1}, s{sMASKHI}, v{b + 2}
            v_lshlrev_b32 v{b + 2}, 16, v{b + 3}
            v_and_b32 v{b + 3}, s{sMASKHI}, v{b + 3}''')
        A.add(self.cs_addr(vA3))
        slots = [(CS + 4 * t, 2 + t) for t in range(3)]
        if L_ == 0:
            A.add(cs(0))
        else:
            A.add(self.cs_load(vA3, slots))
        self.signal(self.x_stores, 4 * L_ + 1)
        A.add(pf.rest())
        if L_ == 0:
            A.add(cs(2))
        self.wait_flags(4 * L_ + 1)
        self.stamp('x1wait')
        NR0 = int(OPT.get('nr0', 6))
        if L_ == 0:
            body, _ = sched(cs(1), {-1: rounds[0] + rounds[1] + rounds[2], 3: rounds[3], 7: rounds[4], 11: rounds[5]}, [])
            A.add(body)
            assert NR0 == 6
        else:
            for r in rounds[:NR0]:
                A.add(r)
        steps = [(tt, ks, [lambda b, tt=tt, ks=ks, t=t: mfma(v(ACC + 16 * t + 4 * tt, 4), R4(XS[t][ks]), b, '0' if ks == 0 else None)
                           for t in range(3)]) for tt in range(4) for ks in range(16)]
        sc = self.stats_combine(T, True)
        mf, pins, first = self.lds_pass(vL16, RING, NR, D, steps, self.x_gate(rounds, {24: [WaitLG([sc[-1]])]}))
        dm = paced(sl + [x for r in rounds[NR0:] for x in r] + (I(f'buffer_load_dword v141, v141, {WSR}, 0 offen sc1') if L_ and int(OPT.get('pt', 1)) else []), 0, 4)
        b16 = first[24 - D] + 1
        sreads = I(f'''
        ds_read_b128 {v(NMU, 4)}, v{vSA}
        ds_read_b128 {v(RS, 4)}, v{vSA} offset:256''')
        st = []

        def hstore(t, tp, O):
            o = I(f'''
            v_permlane16_swap_b32 v{O}, v{O + 2}
            v_permlane16_swap_b32 v{O + 1}, v{O + 3}''')
            so = ['0', f's{sS2}', f's{sS3}'][t]
            s_ = Ins(f'buffer_store_dwordx4 {v(O, 4)}, v{vH0 if t < 2 else vH1}, {WSR}, {so} offen{off(tp * 1024)}{SC0(L_ == 0 and t > 0)}')
            st.append(s_)
            return o + [s_]
        g0 = []
        for t in range(3):
            X = ACC + 16 * t
            g0 += at(b16 + 8, self.gelu_scalar(X, CS + 4 * t, B1 + 4 * t, NMU, RS, T + 4 * (t & 1), VC2, X))
        for t in range(3):
            X = ACC + 16 * t
            g0 += at(first[32] + 4, self.gelu_scalar(X + 4, CS + 4 * t, B1 + 4 * t, NMU + 1, RS + 1, T + 4 * (~t & 1), VC2, X + 2) + hstore(t, 0, X))
        f1 = at(0, bu) + at(28, sc) + at(b16, sreads) + g0
        if L_ == 0:
            pf.push(self.load_w2())
        n_up = int(OPT.get('n_up', 30))
        f2 = paced(pf.take(n_up), 54, 138.0 / n_up)
        body, left = sched(mf, pins, [dm, f2, f1])
        order = {id(x): k for k, x in enumerate(body)}
        assert order[id(sc[-1])] < order[id(mf[first[24 - D]])]
        print('up pass leftovers', [len(x) for x in left])
        A.add(body)
        self.stamp('uppass')
        if L_ == 0:
            pf.push(self.load_wqkv(0))
            pf.push(self.load_wqkv(1))
            pf.push(self.load_wqkv(2))
        seq = left[0] + left[1] + left[2]
        for t in range(3):
            X, W_ = ACC + 16 * t + 8, T
            o = []
            for i in range(4):
                sel, h = i >> 1, i & 1
                o.append(f'v_pk_fma_f32 {v(X + 2 * i, 2)}, {v(CS + 4 * t + 2 * h, 2)}, {v(NMU + 2, 2)}, {v(X + 2 * i, 2)} op_sel:[0,{sel},0] op_sel_hi:[1,{sel},1]')
            for i in range(4):
                sel, h = i >> 1, i & 1
                o.append(f'v_pk_fma_f32 {v(X + 2 * i, 2)}, {v(X + 2 * i, 2)}, {v(RS + 2, 2)}, {v(B1 + 4 * t + 2 * h, 2)} op_sel:[0,{sel},0] op_sel_hi:[1,{sel},1]')
            o += [f'v_pk_mul_f32 {v(W_ + 2 * i, 2)}, {v(X + 2 * i, 2)}, {v(X + 2 * i, 2)}' for i in range(4)]
            o += [f'v_pk_fma_f32 {v(W_ + 2 * i, 2)}, {v(W_ + 2 * i, 2)}, s[{sC2}:{sC2 + 1}], s[{sC2}:{sC2 + 1}] op_sel:[0,0,1] op_sel_hi:[1,0,1]' for i in range(4)]
            o += [f'v_pk_mul_f32 {v(W_ + 2 * i, 2)}, {v(W_ + 2 * i, 2)}, {v(X + 2 * i, 2)}' for i in range(4)]
            o += [f'v_exp_f32 v{W_ + i}, v{W_ + i}' for i in range(8)]
            o += [f'v_pk_add_f32 {v(W_ + 2 * i, 2)}, {v(W_ + 2 * i, 2)}, 1.0 op_sel_hi:[1,0]' for i in range(4)]
            o += [f'v_rcp_f32 v{W_ + i}, v{W_ + i}' for i in range(8)]
            o += [f'v_pk_mul_f32 {v(X + 2 * i, 2)}, {v(X + 2 * i, 2)}, {v(W_ + 2 * i, 2)}' for i in range(4)]
            o += [f'v_cvt_pk_bf16_f32 v{X + i}, v{X + 2 * i}, v{X + 2 * i + 1}' for i in range(4)]
            seq += [Ins(x) for x in o] + hstore(t, 1, X)
        A.add(spread(seq, pf.take(int(OPT.get('n_gelu', 8))), 0.0, 0.7))
        self.stamp('gelu')
        self.h_stores = st
        if L_ == 0:
            A.add(self.cs_save(vA3, slots))
        A.add(pf.take(int(OPT.get('n_h', 6))))

    def phase_dn(self, L_):
        A, e, pf = self.A, self.e, self.pf
        ACC, AD, B2 = 28, 92, 96
        bufs = [96 + 4 * i for i in range(11)]
        NB = len(bufs)
        vS, LA = 140, 141
        A.add(I(f'''
        v_lshrrev_b32 v{vA0}, 8, v{vL16}
        s_lshl_b32 s{sT0}, s{sJ}, 7
        v_lshl_add_u32 v{vA0}, v{vA0}, 4, s{sT0}
        buffer_load_dwordx4 {v(B2, 4)}, v{vA0}, {srd(SRD_B2)}, 0 offen
        buffer_load_dwordx4 {v(B2 + 4, 4)}, v{vA0}, {srd(SRD_B2)}, 0 offen offset:64
        s_mul_i32 s{sT1}, s{sW}, {11 * 4096}
        s_add_u32 s{sT0}, s{sRBH}, s{sT1}
        s_add_u32 s{sT0}, s{sT0}, {HFo(L_)}'''))
        for q in range(4):
            A.add(I(f'''
            s_xor_b32 s{sT1}, s{sW}, {q ^ 3}
            s_lshr_b32 s{sT2}, s{sT1}, 1
            s_lshl_b32 s{sT2}, s{sT2}, 10
            s_and_b32 s{sT1}, s{sT1}, 1
            s_lshl_b32 s{sT1}, s{sT1}, 8
            s_add_u32 s{sT1}, s{sT1}, s{sT2}
            s_add_u32 s{sT1}, s{sT1}, s{sT0}
            v_add_u32 v{AD + q}, s{sT1}, v{vGATH}'''))
        e(f'v_add_u32 v{vA3}, s{sW16K}, v{vL16}')
        for q in range(3):
            e(f'v_xor_b32 v{LA + q}, {(q ^ 3) << 14}, v{vA3}')
        A.add(self.x_addrs(1 if L_ == 0 else -1, vS, 132))
        self.signal(self.h_stores, 4 * L_ + 2)
        A.add(pf.take(int(OPT.get('n_hs', 3))))
        self.unpack_res(ACC + 48, B2)
        assert not any(x.kind == 'vmem' and x.dst[0][0] == 'a' and int(x.dst[0][1:]) < 176 for x in pf.q)
        self.wait_flags(4 * L_ + 2)
        self.stamp('hwait')
        seq = [(q, i) for q in range(4) for i in range(11)]
        ld = [self.ld(v(bufs[n % NB], 4), AD + q, i if i < 10 else f's{sLAST}', 0, ' sc1') for n, (q, i) in enumerate(seq)]
        NB0 = int(OPT.get('dn_nb0', 8))
        mf, pins = [], {-1: ld[:NB0]}
        for n, (q, i) in enumerate(seq):
            for T in range(4):
                mf.append(mfma(v(ACC + 16 * q + 4 * T, 4), a_(16 * i + 4 * T, 4), v(bufs[n % NB], 4), '0' if (i == 0 and q < 3) else None))
            if n + NB0 < len(seq):
                pins.setdefault(4 * n, []).append(ld[n + NB0])
            if n + 1 < len(seq):
                pins.setdefault(4 * n + 3, []).append(WaitVM([ld[n + 1]]))
        wr = []
        for q in range(3):
            for T in range(4):
                w_ = Ins(f'ds_write_b128 v{LA + q}, {v(ACC + 16 * q + 4 * T, 4)} offset:{L_ACT + q * 4096 + T * 1024}')
                wr.append(w_)
                pins.setdefault(44 * (q + 1) + 5 + 2 * T, []).append(w_)
        b = 132 + 17
        pins.setdefault(b, []).extend([WaitLG(None), Ins('s_barrier')])
        k = 0
        for T in range(4):
            for q in range(3):
                pins.setdefault(b + 1 + k, []).append(Ins(f'ds_read_b128 {v(ACC + 16 * q + 4 * T, 4)}, v{vA3} offset:{L_ACT + q * 4096 + T * 1024}'))
                k += 1
        adds = []
        for T in range(4):
            o = [Ins(f'v_add_f32 v{ACC + 4 * T + r}, v{ACC + 4 * T + r}, v{ACC + 16 + 4 * T + r}') for r in range(4)]
            o += [Ins(f'v_add_f32 v{ACC + 4 * T + r}, v{ACC + 4 * T + r}, v{ACC + 32 + 4 * T + r}') for r in range(4)]
            adds += at(b + 9 + 3 * T, o)
        f2 = paced(pf.take(int(OPT.get('n_dn', 6))), 4 * (44 - NB0) + 4, 4) if L_ == 0 else []
        body, left = sched(mf, pins, [adds, f2])
        print('dn leftovers', [len(x) for x in left])
        A.add(body + left[0] + left[1])
        self.stamp('dnpass')
        for i in range(8):
            e(f'v_pk_add_f32 {v(ACC + 48 + 2 * i, 2)}, {v(ACC + 48 + 2 * i, 2)}, {v(ACC + 2 * i, 2)}')
        if L_ == 0:
            st = self.finish_x(ACC + 48, 1, vS, 96)
            self.stamp('dnepi')
            A.add(pf.take(int(OPT.get('n_x2', 6))))
            self.x_stores = st
        else:
            self.finish_x(ACC + 48, -1, vS, 96)
            self.stamp('dnepi')

    def gen(self):
        A, e = self.A, self.e
        e('s_cmp_ge_u32 s2, 256')
        e('s_cbranch_scc1 M_done')
        if PAD and 'padat' not in OPT:
            e('s_memrealtime s[42:43]')
        for r, o in ((SRD_X, 0), (SRD_WQ, 8), (SRD_WS, 88), (pW1, 40), (pWO, 24), (pW2, 56), (SRD_PHI, 16), (SRD_B1, 48), (SRD_B2, 64), (SRD_OUT, 72)):
            e(f's_load_dwordx2 s[{r}:{r + 1}], s[0:1], {o}')
        if PROFILE:
            e(f'v_mov_b32 v{vSTAMP}, 0')
        XR, vWN, vXN = 97, 142, 143
        self.vTR = vA3
        A.add(I(f'''
        s_getpc_b64 s[{sPC}:{sPC + 1}]
        v_lshrrev_b32 v{vA1}, 6, v0
        v_and_b32 v{vL16}, 63, v0
        s_lshr_b32 s{sT0}, s2, 3
        v_readfirstlane_b32 s{sW}, v{vA1}
        v_lshl_add_u32 v{vA0}, v{vL16}, 2, v{vA1}
        v_lshlrev_b32 v{vA0}, 5, v{vA0}
        v_add_lshl_u32 v{vA0}, v{vA0}, s{sT0}, 7
        v_lshlrev_b32 v{vL16}, 4, v{vL16}
        v_min_u32 v{vA0}, M_done-{KNAME}-128, v{vA0}
        s_mov_b64 exec, 15
        global_load_dword v214, v{vA0}, s[{sPC}:{sPC + 1}]
        s_mov_b64 exec, -1
        s_getreg_b32 s{sXCC}, hwreg(HW_REG_XCC_ID, 0, 3)
        s_and_b32 s{sX}, s2, 7
        s_lshr_b32 s{sT0}, s2, 3
        s_and_b32 s{sJ}, s{sT0}, 7
        s_lshr_b32 s{sT0}, s{sT0}, 3
        s_lshl_b32 s{sRB}, s{sX}, 2
        s_add_u32 s{sRB}, s{sRB}, s{sT0}
        s_lshl_b32 s{sRB64K}, s{sRB}, 16
        s_lshl_b32 s{sH}, s{sJ}, 2
        s_add_u32 s{sH}, s{sH}, s{sW}
        s_lshl_b32 s{sGW}, s2, 2
        s_add_u32 s{sGW}, s{sGW}, s{sW}
        s_lshl_b32 s{sW1K}, s{sW}, 10
        s_lshl_b32 s{sW16K}, s{sW}, 14
        s_add_u32 s{sT0}, s{sRB}, s{sJ}
        s_and_b32 s{sT0}, s{sT0}, {3 if int(OPT.get('rot', 0)) else 0}'''))
        for q in range(4):
            A.add(I(f'''
            s_add_u32 s{sT1}, s{sT0}, {q}
            s_and_b32 s{sT1}, s{sT1}, 3
            s_lshl_b32 s{sRQ + q}, s{sT1}, 8
            s_mul_i32 s{sRW + q}, s{sT1}, {128 * 3072}'''))
        for sr, n in ((SRD_WS, WS_USED), (SRD_X, 2048 * 1024), (SRD_OUT, 2048 * 1024), (SRD_PHI, 16384), (SRD_B1, 2752), (SRD_B2, 1024), (SRD_WQ, 512 * 3072)):
            e(f's_mov_b32 s{sr + 2}, {n}')
            e(f's_mov_b32 s{sr + 3}, 0x20000')
        e(f's_mov_b32 s{SRD_P + 3}, 0x20000')
        A.add(I(f'''
        v_lshrrev_b32 v{vA0}, 8, v{vL16}
        v_lshrrev_b32 v{vA1}, 1, v{vA0}
        v_xor_b32 v{vXN}, v{vA0}, v{vA1}
        v_and_b32 v{vXN}, 1, v{vXN}
        v_lshl_or_b32 v{vXN}, v{vXN}, 1, v{vA1}
        v_lshlrev_b32 v{vXN}, 4, v{vXN}
        v_and_b32 v{vA1}, 48, v{vL16}
        v_xor_b32 v{vXN}, v{vXN}, v{vA1}
        v_lshrrev_b32 v{vA1}, 6, v{vL16}
        v_lshl_add_u32 v{vXN}, v{vA1}, 10, v{vXN}
        s_add_u32 s{sT0}, s{sW16K}, s{sRB64K}
        v_add_u32 v{vXN}, s{sT0}, v{vXN}
        v_and_b32 v{vA0}, 1, v{vA0}
        s_and_b32 s{sT0}, s{sW}, 1
        s_lshl_b32 s{sT0}, s{sT0}, 1
        v_or_b32 v{vA0}, s{sT0}, v{vA0}
        v_lshlrev_b32 v{vA0}, 5, v{vA0}
        v_and_b32 v{vA1}, 0x70, v{vL16}
        v_xor_b32 v{vA0}, v{vA0}, v{vA1}
        v_lshrrev_b32 v{vA1}, 7, v{vL16}
        s_lshl_b32 s{sT0}, s{sW}, 3
        v_add_u32 v{vA1}, s{sT0}, v{vA1}
        v_mul_u32_u24 v{vA1}, 3072, v{vA1}
        s_lshl_b32 s{sT0}, s{sJ}, 7
        v_add3_u32 v{vWN}, v{vA1}, v{vA0}, s{sT0}'''))
        xd = lambda ks: I(f'''
        s_add_u32 m0, s{sW16K}, {L_ACT + ks * 1024 - (ks & 3) * 64}
        buffer_load_dwordx4 v{vXN}, {srd(SRD_X)}, s{sRQ + (ks >> 2)} offen{off((ks & 3) * 64)} lds''')

        def wd(c):
            o = []
            for n in range(4):
                if c < 8:
                    q, so = c >> 1, (64 * (c & 1) + 32 * (n & 1)) * 3072 + ((n >> 1) + 1) * 1024
                else:
                    q, so = c - 8, 32 * n * 3072
                o += I(f'''
                s_add_u32 m0, s{sW1K}, {L_WOW + (c & 3) * 16384 + n * 4096}
                s_add_u32 s{sCNT}, s{sRW + q}, {so}
                buffer_load_dwordx4 v{vWN}, {srd(SRD_WQ)}, s{sCNT} offen lds''')
            return o
        self.c_dma = [wd(c) for c in range(12)]
        xds = [xd(ks) for ks in range(16)]
        self.c_toks = [[self.c_dma[c][-1], xds[{4: 11, 5: 15}.get(c, 2 * c + 1)][-1]] for c in range(8)]
        self.q_toks = [self.c_dma[11][-1]]
        pp_, pi_, pf_, ps_ = self.prep(192)
        A.add(pp_)
        e('s_waitcnt lgkmcnt(0)')
        e(f's_load_dword s{sNONCE}, s[{SRD_WS}:{SRD_WS + 1}], 0')
        self.rstamp(62)
        self.stamp('start')
        self.prep_stores = [x for x in ps_ if x.kind == 'vmem']
        ch = lambda c: xds[2 * c] + xds[2 * c + 1] + self.c_dma[c]
        wu, wl, self.wphi_perm = self.load_wphi(224)
        cu, cst = self.clears(0, 234)
        self.prep_stores += cst
        X_ = int(OPT.get('xp', 0))
        if X_ >= 1:
            for x in self.prep_stores:
                x.text = x.text.replace(WSR, srd(SRD_B2))
        if X_ >= 2:
            for x in pi_:
                if x.kind == 'vmem':
                    x.text = x.text.replace(srd(SRD_P), srd(SRD_B2))
        A.add(pi_ + ch(0))
        mainA, self.A = self.A, Asm()
        A = self.A
        A.add(self.kv_addrs(0) + cu)
        rl = I(f'''
        buffer_load_dwordx4 {v(RES, 4)}, v223, {srd(SRD_X)}, 0 offen
        buffer_load_dwordx4 {v(RES + 4, 4)}, v223, {srd(SRD_X)}, 0 offen offset:64''')
        xs = lambda a, b: [x for ks in range(a, b) for x in xds[ks]]
        cd = self.c_dma
        fl = I(f'buffer_load_dword v222, v{vFLG}, {WSR}, 0 offen sc1')
        self.later = {0: ch(3), 1: cd[4] + xs(8, 12), 2: cd[5] + xs(12, 16), 3: cd[6] + wl, 4: cd[7],
                      5: cd[8], 6: cd[9] + rl + fl, 7: cd[10]}
        self.xlast = xds[15][-1]
        for k in range(1, 16):
            e(f's_mov_b32 s{sK0 + k}, {4096 * k}')
        c1 = -2 * 0.7978845608028654 * 1.4426950408889634
        A.add(I(f'''
        s_mov_b32 s{sONE}, 0x3f803f80
        s_mov_b32 s{sMASKHI}, 0xffff0000
        s_movk_i32 s{sT0}, 9
        s_cmp_lt_u32 s{sW}, 3
        s_addc_u32 s{sT0}, s{sT0}, 0
        s_lshl_b32 s{sLAST}, s{sT0}, 12
        s_mov_b32 s{sC2}, {f32(c1 * 0.044715)}
        s_mov_b32 s{sC2 + 1}, {f32(c1)}
        s_lshl_b64 s[{sJM}:{sJM + 1}], 1, s{sJ}
        s_mul_i32 s{sB_WQ}, s{sH}, 49152
        s_add_u32 s{sB_WQ}, s{sB_WQ}, {WS["WQKV"]}
        s_lshl_b32 s{sT0}, s{sH}, 14
        s_add_u32 s{sB_WO}, s{sT0}, {WS["WO"]}
        s_add_u32 s{sB_W1}, s{sT0}, {WS["W1"]}
        s_add_u32 s{sB_W1 + 1}, s{sT0}, {WS["W1"] + 32 * 16384}
        s_add_u32 s{sB_W1 + 2}, s{sT0}, {WS["W1"] + 64 * 16384}
        s_cmp_lt_u32 s{sH}, 22
        s_cselect_b32 s{sB_W1 + 2}, s{sB_W1 + 2}, {OOB}
        s_mul_i32 s{sT0}, s{sJ}, 43
        s_mul_i32 s{sT1}, s{sW}, 11
        s_add_u32 s{sT0}, s{sT0}, s{sT1}
        s_lshl_b32 s{sT0}, s{sT0}, 12
        s_add_u32 s{sB_W2}, s{sT0}, {WS["W2"]}
        s_cmp_lt_u32 s{sW}, 3
        s_cselect_b32 s{sB_W2x}, s{sB_W2}, {OOB}'''))
        self.masks = []
        for gi in range(4):
            m = 0x000f000f << (4 * gi)
            self.masks += I(f'''s_mov_b32 s{sM + 2 * gi}, 0x{m:08x}
            s_mov_b32 s{sM + 2 * gi + 1}, 0x{m:08x}''')
        e(f's_mul_i32 s{sRBH}, s{sRB}, {RBH}')
        A.add(wu)
        A.add(self.rowmajor_off(223, vA1))
        A.add(I(f'''
        v_lshrrev_b32 v{vA0}, 8, v{vL16}
        v_and_b32 v{vA1}, 1, v{vA0}
        v_lshrrev_b32 v{vPF}, 1, v{vA0}
        v_and_b32 v{vGATH}, 0xf0, v{vL16}
        v_lshl_add_u32 v{vGATH}, v{vA1}, 9, v{vGATH}
        v_lshl_add_u32 v{vGATH}, v{vPF}, 11, v{vGATH}
        v_bfe_u32 v{vPF}, v{vL16}, 7, 1
        v_lshl_or_b32 v{vA1}, v{vA1}, 1, v{vPF}
        v_xor_b32 v{vA1}, s{sW}, v{vA1}
        v_lshlrev_b32 v{vA1}, 5, v{vA1}
        v_bfe_u32 v{vPF}, v{vL16}, 6, 2
        v_lshl_add_u32 v{vPF}, v{vA0}, 3, v{vPF}
        v_lshl_add_u32 v{vA1}, v{vPF}, 7, v{vA1}
        v_bfe_u32 v{vPF}, v{vL16}, 4, 2
        v_lshl_add_u32 v{vA1}, v{vPF}, 3, v{vA1}
        v_add_u32 v{self.vTR}, {L_WOW}, v{vA1}
        v_bfe_u32 v{vA1}, v{vL16}, 6, 2
        v_lshrrev_b32 v{vPF}, 1, v{vA1}
        v_xor_b32 v{vA1}, v{vA1}, v{vPF}
        v_and_b32 v{vA1}, 1, v{vA1}
        v_lshl_or_b32 v{vA1}, v{vA1}, 1, v{vPF}
        v_xor_b32 v{vA1}, v{vA1}, v{vA0}
        v_lshlrev_b32 v{vA1}, 4, v{vA1}
        v_and_b32 v{vPF}, 0xf0, v{vL16}
        v_lshl_add_u32 v{XR}, v{vPF}, 2, v{vA1}
        v_bfe_u32 v{vFLG}, v{vL16}, 4, 3
        s_lshl_b32 s{sT0}, s{sRB}, 7
        s_add_u32 s{sT0}, s{sT0}, {WS['FLAG']}
        v_lshl_add_u32 v{vFLG}, v{vFLG}, 2, s{sT0}
        s_lshr_b32 s{sROT4}, s{sRQ}, 6
        s_lshr_b32 s{sT0}, s{sRB}, 2
        s_lshr_b32 s{sT1}, s{sROT4}, 1
        s_sub_u32 s{sPC_}, s{sT0}, s{sT1}
        s_and_b32 s{sPC_}, s{sPC_}, 7
        s_and_b32 s{sT1}, s{sRB}, 3
        s_lshl_b32 s{sT1}, s{sT1}, 12
        v_add_u32 v220, s{sT1}, v{self.vTR}
        s_lshl_b32 s{sT0}, s{sT0}, 11
        s_and_b32 s{sT1}, s{sRB}, 1
        s_lshl_b32 s{sT1}, s{sT1}, 10
        s_add_u32 s{sT0}, s{sT0}, s{sT1}
        s_and_b32 s{sT1}, s{sRB}, 2
        s_lshl_b32 s{sT1}, s{sT1}, 13
        s_add_u32 s{sT0}, s{sT0}, s{sT1}
        s_add_u32 s{sT0}, s{sT0}, s{sB_WQ}
        v_add_u32 v221, s{sT0}, v{vL16}
        s_lshl_b32 s{sT0}, s{sX}, 13
        s_add_u32 s{sT0}, s{sT0}, {WS['PFLAG']}
        s_cmp_eq_u32 s{sW}, 0
        s_cselect_b32 s{sT0}, s{sT0}, {OOB}
        v_lshl_add_u32 v{vPF}, v{vL16}, 3, s{sT0}
        s_mov_b32 s{sS3}, 0x05040100
        s_mov_b32 s{sS4}, 0x07060302'''))
        for i in range(4):
            e(f'v_mov_b32 v{ONES + i}, s{sONE}')
        setup, self.A = A.items, mainA
        A = self.A
        groups = [xds[2], xds[3]] + [self.c_dma[1][i:i + 3] for i in range(0, 12, 3)] + [xds[4], xds[5]]
        ok, live_exec = [], False
        for k, it in enumerate(setup):
            scc_live = False
            for nx in setup[k:]:
                if nx.op.startswith('s_cselect') or nx.op.startswith('s_addc'):
                    scc_live = True
                    break
                if nx.kind == 'salu' and not nx.op.startswith('s_mov') and not nx.op.startswith('s_mul'):
                    break
            ok.append(not scc_live and not live_exec)
            if 'exec' in it.dst:
                live_exec = '-1' not in it.text
        g = 0
        for k, it in enumerate(setup):
            if g < len(groups) and ok[k] and k >= len(setup) * g / len(groups):
                A.add(groups[g])
                g += 1
            A.add([it])
        assert g == len(groups)
        e('s_waitcnt lgkmcnt(0)')
        A.add(I(f'''
        s_lshr_b32 s{sNONCE}, s{sNONCE}, 3
        s_mul_i32 s{sNONCE}, s{sNONCE}, 1664525
        s_add_u32 s{sNONCE}, s{sNONCE}, 1013904223
        s_lshl_b32 s{sNONCE}, s{sNONCE}, 3'''))
        self.stamp('setup')
        A.add(pf_ + self.c_dma[2] + ps_ + cst)
        self.stamp('issued')
        for L_ in range(2):
            self.phase_qkv(L_)
            self.phase_wo(L_)
            self.phase_up(L_)
            self.phase_dn(L_)
        assert not self.pf.q
        if PROFILE:
            e('s_waitcnt vmcnt(0)')
            self.stamp('end')
            self.rstamp(63)
            A.add(I(f'''
            s_lshl_b32 s{sT0}, s{sGW}, 8
            s_add_u32 s{sT0}, s{sT0}, {WS["PROF"]}
            v_lshrrev_b32 v{vA0}, 2, v{vL16}
            buffer_store_dword v{vSTAMP}, v{vA0}, {WSR}, s{sT0} offen'''))
        if PAD:
            A.raw(f'''
            s_waitcnt vmcnt(0) lgkmcnt(0)
            Lpad:
            s_memrealtime s[84:85]
            s_waitcnt lgkmcnt(0)
            s_sub_u32 s84, s84, s42
            s_cmp_lt_u32 s84, {PAD}
            s_cbranch_scc1 Lpad''')
        e('M_done:')
        e('s_endpgm')
        return A


def main():
    M = Main()
    body, st = M.gen().finalize()
    txt = ['; hedgehog linear attention + channel MLP, two interleaved layer pairs (generated by tools/gen3.py)',
           f'; @launch grid=(256,1,1) block=(256,1,1) lds={LDS_BYTES}',
           '.amdgcn_target "amdgcn-amd-amdhsa--gfx950"', '.text',
           f'.globl {KNAME}', '.p2align 8', f'.type {KNAME},@function', f'{KNAME}:']
    txt += [('' if l.endswith(':') else '    ') + l for l in body if l.strip()]
    txt += ['.section .rodata,"a"', '.p2align 6', f'''.amdhsa_kernel {KNAME}
  .amdhsa_next_free_vgpr 512
  .amdhsa_next_free_sgpr 102
  .amdhsa_accum_offset 256
  .amdhsa_group_segment_fixed_size 0
  .amdhsa_kernarg_size 96
  .amdhsa_user_sgpr_count 2
  .amdhsa_user_sgpr_kernarg_segment_ptr 1
  .amdhsa_system_sgpr_workgroup_id_x 1
.end_amdhsa_kernel''']
    open(OUTFILE, 'w').write('\n'.join(txt) + '\n')
    json.dump({'WS': WS, 'stamps': M.names, 'ver': 3}, open(OUTFILE + '.json', 'w'))
    print('main', st, 'ws', WS_USED)


main()
```
